```python
import torch

def _softmax(x, axis=-1):
    return torch.softmax(x, dim=axis)
def _gelu(x):
    return torch.nn.functional.gelu(x, approximate="tanh")
def _silu(x):
    return torch.nn.functional.silu(x)
def _sigmoid(x):
    return torch.sigmoid(x)
def _layernorm(x, axis=-1, eps=1e-5):
    m = x.mean(dim=axis, keepdim=True)
    v = x.var(dim=axis, keepdim=True, unbiased=False)
    return (x - m) / torch.sqrt(v + eps)
def _scatter_add(tgt, idx, src, axis=0):
    return tgt.clone().index_add_(axis, idx, src)
def _segment_sum(src, seg, n):
    out = torch.zeros((n,) + src.shape[1:], dtype=src.dtype)
    return out.index_add_(0, seg, src)
def _pad(x, pw):
    flat = tuple(v for pair in reversed(pw) for v in pair)
    return torch.nn.functional.pad(x, flat)

kernel_name = 'gated_mix__sliding_local_dilated__mha_block__prompt'

def setup_inputs():

    _w = (lambda a: (lambda t: t.to(torch.bfloat16) if t.is_floating_point() else t)(torch.as_tensor(a)))
    def _A_setup():
        B, S, D = 1, 2048, 448
        return {
            "x": _w((lambda *s: torch.randn(*s, dtype=torch.bfloat16) * 0.05)(B, S, D)),
            "wqkv": _w((lambda *s: torch.randn(*s, dtype=torch.bfloat16) * 1.6)(D, 3 * D)),
            "wo": _w((lambda *s: torch.randn(*s, dtype=torch.bfloat16) * 0.05)(D, D)),
        }
    _A_in = _A_setup()

    def _B_setup():
        B, S, D, H = 1, 2048, 448, 16
        return {
            "x": _w((lambda *s: torch.randn(*s, dtype=torch.bfloat16) * 0.05)(B, S, D)),
            "wqkv": _w((lambda *s: torch.randn(*s, dtype=torch.bfloat16) * 1.6)(D, 3 * D)),
            "wo": _w((lambda *s: torch.randn(*s, dtype=torch.bfloat16) * 0.1)(D, D)),
        }
    _B_in = _B_setup()

    return {
        "A_x": _A_in["x"],
        "A_wqkv": _A_in["wqkv"],
        "A_wo": _A_in["wo"],
        "B_x": _B_in["x"],
        "B_wqkv": _B_in["wqkv"],
        "B_wo": _B_in["wo"],
        "gate_w": _w((lambda *s: torch.randn(*s, dtype=torch.bfloat16) * 0.05)(448) * 16.0),
    }

def reference(A_x, A_wqkv, A_wo, B_x, B_wqkv, B_wo, gate_w):
    def _A_ref(x, wqkv, wo):
        B, S, D = x.shape
        H = 16; Dh = D // H
        W, dil = 8, 2
        qkv = (lambda x, *d: x.permute(*d))((x @ wqkv).reshape(B, S, 3, H, Dh), 2, 0, 3, 1, 4)
        q, k, v = qkv[0], qkv[1], qkv[2]
        scale = Dh ** -0.5
        pos = torch.arange(S)
        off = torch.arange(W) * dil
        idx = pos[:, None] - off[None, :]
        mask = idx >= 0
        idx_c = torch.where(mask, idx, 0).reshape(-1)
        kg = k[:, :, idx_c, :].reshape(B, H, S, W, Dh)
        vg = v[:, :, idx_c, :].reshape(B, H, S, W, Dh)
        logits = torch.einsum("bhsd,bhswd->bhsw", q, kg) * scale
        logits = torch.where(mask[None, None, :, :], logits, -1e9)
        attn = _softmax(logits, axis=-1)
        o = torch.einsum("bhsw,bhswd->bhsd", attn, vg)
        return (lambda x, *d: x.permute(*d))(o, 0, 2, 1, 3).reshape(B, S, D) @ wo

    def _B_ref(x, wqkv, wo):
        B, S, D = x.shape
        H = 16
        Dh = D // H
        qkv = (lambda x, *d: x.permute(*d))((x @ wqkv).reshape(B, S, 3, H, Dh), 2, 0, 3, 1, 4)
        q, k, v = qkv[0], qkv[1], qkv[2]
        scores = torch.einsum("bhqd,bhkd->bhqk", q, k) * (Dh ** -0.5)
        p = _softmax(scores, axis=-1)
        o = torch.einsum("bhqk,bhkd->bhqd", p, v)
        return (lambda x, *d: x.permute(*d))(o, 0, 2, 1, 3).reshape(B, S, D) @ wo

    x = A_x
    g = _sigmoid((x * gate_w).sum(-1, keepdims=True))
    a = _A_ref(x, A_wqkv, A_wo)
    b = _B_ref(x, B_wqkv, B_wo)
    return g * a + (1 - g) * b
```

```python
class Asm:
    def __init__(self):
        self.lines = []
    def __call__(self, s, *a):
        for l in s.strip("\n").split("\n"):
            self.lines.append("    " + l.strip())
    def label(self, name):
        self.lines.append(name + ":")
    def comment(self, s):
        self.lines.append("    ; " + s)
    def text(self):
        return "\n".join(self.lines) + "\n"

def vr(a, n=1):
    return f"v{a}" if n == 1 else f"v[{a}:{a+n-1}]"
def sr(a, n=1):
    return f"s{a}" if n == 1 else f"s[{a}:{a+n-1}]"

def kernel_header(name):
    return f""".globl {name}
.p2align 8
.type {name},@function
{name}:
"""

def kernel_desc(name, vgpr, sgpr=102, accum=None):
    if accum is None:
        accum = (vgpr + 3) // 4 * 4
    return f""".amdhsa_kernel {name}
  .amdhsa_next_free_vgpr {vgpr}
  .amdhsa_next_free_sgpr {sgpr}
  .amdhsa_accum_offset {accum}
  .amdhsa_group_segment_fixed_size 0
  .amdhsa_kernarg_size 80
  .amdhsa_user_sgpr_count 2
  .amdhsa_user_sgpr_kernarg_segment_ptr 1
  .amdhsa_system_sgpr_workgroup_id_x 1
.end_amdhsa_kernel
"""
```

```python
import math, struct
def f32bits(x):
    return struct.unpack("<I", struct.pack("<f", x))[0]
MB = 1 << 20
Q_OFF, K_OFF, V_OFF, O_OFF, G_OFF = 0, 4 * MB, 8 * MB, 12 * MB, 16 * MB
WS_USED = 16 * MB + 8192
CSCALE = (28 ** -0.5) * math.log2(math.e)
def srd(a, d, base, nbytes):
    a(f"""s_mov_b32 s{d}, s{base}
    s_and_b32 s{d+1}, s{base+1}, 0xffff
    s_mov_b32 s{d+2}, {nbytes}
    s_mov_b32 s{d+3}, 0x00020000""")
```

```python
from asmlib import *
import math, struct
from gen_common import *

class Q:
    def __init__(self): self.q = []
    def push(self, tag): self.q.append(tag)
    def need(self, tag):
        last = -1
        for i, t in enumerate(self.q):
            if t == tag: last = i
        if last < 0: return None
        n = len(self.q) - 1 - last
        self.q = self.q[last + 1:]
        return n

def gen_k2(use_perm=False):
    a = Asm()
    QF, KF, VF, P, S0, S1, O, CI = 16, 24, 32, 40, 48, 64, 80, 96
    VB = 112
    LQ, LK0, LK1, LV0, LV1, P2, OA = 116, 124, 132, 140, 148, 156, 164
    T = 180
    COMB = 65536; FLAG = 81920; EXCH = 82176
    S = [S0, S1]
    a("""s_cmp_ge_u32 s2, 256
    s_cbranch_scc1 Lk2_end
    s_load_dwordx2 s[12:13], s[0:1], 72
    s_and_b32 s32, s2, 7
    s_lshr_b32 s33, s2, 3
    s_lshl_b32 s32, s32, 1
    s_and_b32 s37, s33, 1
    s_add_u32 s32, s32, s37            ; h
    s_lshr_b32 s33, s33, 1             ; qb
    v_lshrrev_b32 v3, 6, v0
    v_and_b32 v2, 63, v0
    v_readfirstlane_b32 s34, v3        ; w
    v_lshlrev_b32 v1, 4, v2            ; lane*16
    s_mov_b32 s70, 0
    s_and_b32 s37, s34, 3
    s_lshl_b32 s35, s33, 2
    s_add_u32 s35, s35, s37            ; qt
    s_lshr_b32 s36, s34, 2             ; ksp
    s_lshl_b32 s37, s36, 12
    v_add_u32 v112, s37, v1
    s_waitcnt lgkmcnt(0)""")
    srd(a, 16, 12, WS_USED)
    a(f"""s_add_u32 s37, s32, 16
    s_lshl_b32 s38, s37, 6
    s_add_u32 s38, s38, s35
    s_lshl_b32 s38, s38, 11
    buffer_load_dwordx4 {vr(QF,4)}, v1, s[16:19], s38 offen
    buffer_load_dwordx4 {vr(QF+4,4)}, v1, s[16:19], s38 offen offset:1024
    s_lshl_b32 s40, s37, 17            ; (16+h)*131072
    s_lshl_b32 s41, s34, 10            ; w*1024
    s_add_u32 s40, s40, s41
    s_add_u32 s42, s40, {V_OFF}        ; V base
    s_add_u32 s40, s40, {K_OFF}        ; K base
    s_mov_b32 s48, 0xffffffff
    s_mov_b32 s49, 0""")
    def dma(c):
        slot = c % 4
        a(f"""s_add_u32 s43, s40, {c*8192}
        s_add_u32 m0, s41, {slot*16384}
        s_add_u32 s44, s42, {c*8192}
        buffer_load_dwordx4 v1, s[16:19], s43 offen lds
        s_add_u32 m0, s41, {slot*16384+8192}
        s_nop 0
        buffer_load_dwordx4 v1, s[16:19], s44 offen lds""")
    for c in range(3): dma(c)

    def finalize(Oreg, soff, check=False):
        a(f"""v_mov_b32 v3, v{Oreg+12}
        v_mov_b32 v4, v{Oreg+12}
        s_nop 1
        v_permlane32_swap_b32 v3, v4
        v_rcp_f32 v5, v4""")
        if check:
            a(f"""v_mov_b32 v6, 0.5
            v_mov_b32 v7, {f32bits(2.0**40)}
            v_cmp_nge_f32 vcc, v4, v6
            v_cmp_nle_f32 s[60:61], v4, v7
            s_or_b64 s[60:61], s[60:61], vcc""")
        else:
            a("s_nop 0")
        for r in range(16):
            a(f"v_mul_f32 v{Oreg+r}, v5, v{Oreg+r}")
        for p in range(8):
            a(f"v_cvt_pk_bf16_f32 v{P+p}, v{Oreg+2*p}, v{Oreg+2*p+1}")
        a(f"""v_cndmask_b32 v{P+6}, 0, v{P+6}, s[48:49]
        v_cndmask_b32 v{P+7}, 0, v{P+7}, s[48:49]
        buffer_store_dwordx4 {vr(P,4)}, v1, s[16:19], {soff} offen
        buffer_store_dwordx4 {vr(P+4,4)}, v1, s[16:19], {soff} offen offset:1024""")

    a("""s_cmp_eq_u32 s36, 0
    s_cbranch_scc0 Lk2_nolocal""")
    a(f"""s_lshl_b32 s38, s32, 6
    s_add_u32 s39, s38, s35            ; h*64+qt
    s_sub_u32 s45, s35, 1
    s_max_i32 s45, s45, 0
    s_add_u32 s45, s38, s45            ; h*64+prev
    s_lshl_b32 s39, s39, 11
    s_lshl_b32 s45, s45, 11
    buffer_load_dwordx4 {vr(LQ,4)}, v1, s[16:19], s39 offen
    buffer_load_dwordx4 {vr(LQ+4,4)}, v1, s[16:19], s39 offen offset:1024
    s_add_u32 s46, s45, {K_OFF}
    buffer_load_dwordx4 {vr(LK0,4)}, v1, s[16:19], s46 offen
    buffer_load_dwordx4 {vr(LK0+4,4)}, v1, s[16:19], s46 offen offset:1024
    s_add_u32 s46, s39, {K_OFF}
    buffer_load_dwordx4 {vr(LK1,4)}, v1, s[16:19], s46 offen
    buffer_load_dwordx4 {vr(LK1+4,4)}, v1, s[16:19], s46 offen offset:1024
    s_add_u32 s46, s45, {V_OFF}
    buffer_load_dwordx4 {vr(LV0+4,4)}, v1, s[16:19], s46 offen offset:1024
    s_add_u32 s46, s39, {V_OFF}
    buffer_load_dwordx4 {vr(LV1,4)}, v1, s[16:19], s46 offen
    buffer_load_dwordx4 {vr(LV1+4,4)}, v1, s[16:19], s46 offen offset:1024
    v_and_b32 v3, 31, v2
    v_lshrrev_b32 v4, 5, v2
    v_lshlrev_b32 v4, 2, v4
    v_sub_u32 v8, v3, v4               ; u
    s_cmp_eq_u32 s35, 0
    s_cselect_b32 s46, 1056, 32
    v_add_u32 v9, s46, v8              ; u_prev
    v_mov_b32 v10, 0xff800000          ; -inf
    s_waitcnt vmcnt(3)
    v_mfma_f32_32x32x16_bf16 {vr(S0,16)}, {vr(LK0,4)}, {vr(LQ,4)}, 0
    v_mfma_f32_32x32x16_bf16 {vr(S0,16)}, {vr(LK0+4,4)}, {vr(LQ+4,4)}, {vr(S0,16)}
    v_mfma_f32_32x32x16_bf16 {vr(S1,16)}, {vr(LK1,4)}, {vr(LQ,4)}, 0
    v_mfma_f32_32x32x16_bf16 {vr(S1,16)}, {vr(LK1+4,4)}, {vr(LQ+4,4)}, {vr(S1,16)}""")
    items = [(S0 + j, 9, 8 * (j >> 2) + (j & 3)) for j in range(8, 16)] + [(S1 + j, 8, 8 * (j >> 2) + (j & 3)) for j in range(16)]
    first = True
    for b in range(0, 24, 8):
        grp = items[b:b + 8]
        for n, (reg, ub, cj) in enumerate(grp):
            a(f"v_subrev_u32 v{T+n}, {cj}, v{ub}")
            a(f"v_and_b32 v{T+n}, {(~14) & 0xffffffff}, v{T+n}")
        for n, (reg, ub, cj) in enumerate(grp):
            a(f"v_cmp_eq_u32 s[{72+2*n}:{73+2*n}], 0, v{T+n}")
        if first:
            a("s_nop 7")
            first = False
        else:
            a("s_nop 1")
        for n, (reg, ub, cj) in enumerate(grp):
            a(f"v_cndmask_b32 v{reg}, v10, v{reg}, s[{72+2*n}:{73+2*n}]")
    regs = [it[0] for it in items]
    a(f"v_max3_f32 v3, v{regs[0]}, v{regs[1]}, v{regs[2]}")
    for n in range(3, 23, 2):
        a(f"v_max3_f32 v3, v3, v{regs[n]}, v{regs[n+1]}")
    a(f"""v_max_f32 v3, v3, v{regs[23]}
    v_mov_b32 v4, v3
    s_nop 1
    v_permlane32_swap_b32 v3, v4
    v_max_f32 v3, v3, v4""")
    for r in regs:
        a(f"v_sub_f32 v{r}, v{r}, v3")
    for r in regs:
        a(f"v_exp_f32 v{r}, v{r}")
    a("s_nop 0")
    for p in range(4):
        a(f"v_cvt_pk_bf16_f32 v{P2+p}, v{S0+8+2*p}, v{S0+9+2*p}")
    for p in range(8):
        a(f"v_cvt_pk_bf16_f32 v{P+p}, v{S1+2*p}, v{S1+2*p+1}")
    a(f"""s_waitcnt vmcnt(0)
    s_nop 0
    v_mfma_f32_32x32x16_bf16 {vr(OA,16)}, {vr(LV0+4,4)}, {vr(P2,4)}, 0
    v_mfma_f32_32x32x16_bf16 {vr(OA,16)}, {vr(LV1,4)}, {vr(P,4)}, {vr(OA,16)}
    v_mfma_f32_32x32x16_bf16 {vr(OA,16)}, {vr(LV1+4,4)}, {vr(P+4,4)}, {vr(OA,16)}
    s_lshl_b32 s46, s35, 4
    s_add_u32 s46, s46, s32
    s_lshl_b32 s46, s46, 11
    s_add_u32 s46, s46, {O_OFF}
    s_nop 12""")
    finalize(OA, "s46")
    a.label("Lk2_nolocal")
    a(f"""s_waitcnt vmcnt(4)
    s_barrier
    ds_read_b128 {vr(KF,4)}, v1
    ds_read_b128 {vr(KF+4,4)}, v1 offset:1024
    s_waitcnt lgkmcnt(0)
    v_mfma_f32_32x32x16_bf16 {vr(S0,16)}, {vr(KF,4)}, {vr(QF,4)}, 0
    v_mfma_f32_32x32x16_bf16 {vr(S0,16)}, {vr(KF+4,4)}, {vr(QF+4,4)}, {vr(S0,16)}
    s_nop 15
    v_max3_f32 v3, v{S0}, v{S0+1}, v{S0+2}""")
    for n in range(3, 15, 2):
        a(f"v_max3_f32 v3, v3, v{S0+n}, v{S0+n+1}")
    a(f"""v_max_f32 v3, v3, v{S0+15}
    v_mov_b32 v4, v3
    s_nop 1
    v_permlane32_swap_b32 v3, v4
    v_max_f32 v3, v3, v4""")
    a.label("Lk2_setci")
    for r in range(16):
        a(f"v_sub_f32 v{CI+r}, 0, v3")
    for r in range(16):
        a(f"v_mov_b32 v{O+r}, 0")
    lq = Q(); vq = Q()
    vq.push("c1"); vq.push("c1"); vq.push("c2"); vq.push("c2")
    def off(i, v):
        c = i >> 1
        return (c % 4) * 16384 + (i & 1) * 2048 + (8192 if v else 0)
    def kread(i):
        a(f"ds_read_b128 {vr(KF,4)}, v{VB} offset:{off(i,0)}")
        a(f"ds_read_b128 {vr(KF+4,4)}, v{VB} offset:{off(i,0)+1024}")
        lq.push(f"k{i}"); lq.push(f"k{i}")
    def vread(i):
        a(f"ds_read_b128 {vr(VF,4)}, v{VB} offset:{off(i,1)}")
        a(f"ds_read_b128 {vr(VF+4,4)}, v{VB} offset:{off(i,1)+1024}")
        lq.push(f"v{i}"); lq.push(f"v{i}")
    def qk(i):
        a(f"s_waitcnt lgkmcnt({lq.need(f'k{i}')})")
        a(f"v_mfma_f32_32x32x16_bf16 {vr(S[i%2],16)}, {vr(KF,4)}, {vr(QF,4)}, {vr(CI,16)}")
        a(f"v_mfma_f32_32x32x16_bf16 {vr(S[i%2],16)}, {vr(KF+4,4)}, {vr(QF+4,4)}, {vr(S[i%2],16)}")
    kread(0)
    qk(0)
    kread(1)
    vread(0)
    a("s_nop 7")
    for i in range(32):
        c = i >> 1
        if i % 2 == 0:
            n = vq.need(f"c{c+1}")
            if n is not None:
                a(f"s_waitcnt vmcnt({n})")
            a("s_barrier")
            if c + 3 < 16:
                dma(c + 3); vq.push(f"c{c+3}"); vq.push(f"c{c+3}")
        if i + 1 < 32:
            qk(i + 1)
            if i + 2 < 32: kread(i + 2)
        s = S[i % 2]
        for j in range(16):
            a(f"v_exp_f32 v{s+j}, v{s+j}")
            if j % 2 == 1 and j >= 3:
                p = (j - 3) // 2
                if use_perm: a(f"v_perm_b32 v{P+p}, v{s+2*p+1}, v{s+2*p}, s50")
                else: a(f"v_cvt_pk_bf16_f32 v{P+p}, v{s+2*p}, v{s+2*p+1}")
        a(f"s_waitcnt lgkmcnt({lq.need(f'v{i}')})")
        if use_perm: a(f"v_perm_b32 v{P+7}, v{s+15}, v{s+14}, s50")
        else: a(f"v_cvt_pk_bf16_f32 v{P+7}, v{s+14}, v{s+15}")
        a(f"v_mfma_f32_32x32x16_bf16 {vr(O,16)}, {vr(VF,4)}, {vr(P,4)}, {vr(O,16)}")
        a("s_nop 0")
        a(f"v_mfma_f32_32x32x16_bf16 {vr(O,16)}, {vr(VF+4,4)}, {vr(P+4,4)}, {vr(O,16)}")
        if i + 1 < 32: vread(i + 1)
    a(f"""s_and_b32 s37, s34, 3
    s_lshl_b32 s37, s37, 12
    s_add_u32 s37, s37, {COMB}
    v_add_u32 v6, s37, v1
    s_nop 12
    s_cmp_eq_u32 s36, 0
    s_cbranch_scc1 Lk2_e1""")
    for r in range(4):
        a(f"ds_write_b128 v6, {vr(O+4*r,4)} offset:{r*1024}")
    a("s_waitcnt lgkmcnt(0)")
    a.label("Lk2_e1")
    a("""s_barrier
    s_cmp_eq_u32 s36, 0
    s_cbranch_scc0 Lk2_e2""")
    for r in range(4):
        a(f"ds_read_b128 {vr(T+4*r,4)}, v6 offset:{r*1024}")
    a(f"""s_add_u32 s46, s35, 64
    s_lshl_b32 s46, s46, 4
    s_add_u32 s46, s46, s32
    s_lshl_b32 s46, s46, 11
    s_add_u32 s46, s46, {O_OFF}
    s_waitcnt lgkmcnt(0)""")
    for r in range(16):
        a(f"v_add_f32 v{O+r}, v{O+r}, v{T+r}")
    finalize(O, "s46", check=True)
    a(f"""s_cmp_lg_u64 s[60:61], 0
    s_cselect_b32 s62, 1, 0
    v_mov_b32 v7, s62
    s_lshl_b32 s37, s34, 2
    s_add_u32 s37, s37, {FLAG}
    v_mov_b32 v6, s37
    ds_write_b32 v6, v7
    s_waitcnt lgkmcnt(0)""")
    a.label("Lk2_e2")
    a(f"""s_barrier
    s_cmp_lg_u32 s70, 0
    s_cbranch_scc1 Lk2_end
    v_mov_b32 v6, {FLAG}
    ds_read_b128 v[8:11], v6
    s_waitcnt lgkmcnt(0)
    v_or3_b32 v8, v8, v9, v10
    v_or_b32 v8, v8, v11
    s_nop 0
    v_readfirstlane_b32 s62, v8
    s_nop 3
    s_cmp_eq_u32 s62, 0
    s_cbranch_scc1 Lk2_end""")
    a(f"""s_mov_b32 s70, 1
    v_mov_b32 v12, 0xff800000
    s_mov_b32 s63, 0""")
    a.label("Lk2_fb")
    a(f"""s_barrier
    s_lshl_b32 s43, s63, 13
    s_add_u32 s43, s43, s40
    s_mov_b32 m0, s41
    s_nop 0
    buffer_load_dwordx4 v1, s[16:19], s43 offen lds
    s_waitcnt vmcnt(0)
    s_barrier""")
    for u in range(2):
        a(f"""ds_read_b128 {vr(KF,4)}, v{VB} offset:{u*2048}
        ds_read_b128 {vr(KF+4,4)}, v{VB} offset:{u*2048+1024}
        s_waitcnt lgkmcnt(0)
        v_mfma_f32_32x32x16_bf16 {vr(S0,16)}, {vr(KF,4)}, {vr(QF,4)}, 0
        v_mfma_f32_32x32x16_bf16 {vr(S0,16)}, {vr(KF+4,4)}, {vr(QF+4,4)}, {vr(S0,16)}
        s_nop 15""")
        for n in range(0, 16, 2):
            a(f"v_max3_f32 v12, v12, v{S0+n}, v{S0+n+1}")
    a(f"""s_add_u32 s63, s63, 1
    s_cmp_lt_u32 s63, 16
    s_cbranch_scc1 Lk2_fb
    v_mov_b32 v4, v12
    s_nop 1
    v_permlane32_swap_b32 v12, v4
    v_max_f32 v3, v12, v4
    s_lshl_b32 s37, s34, 8
    s_add_u32 s37, s37, {EXCH}
    v_lshlrev_b32 v5, 2, v2
    v_add_u32 v6, s37, v5
    ds_write_b32 v6, v3
    s_xor_b32 s37, s34, 4
    s_lshl_b32 s37, s37, 8
    s_add_u32 s37, s37, {EXCH}
    v_add_u32 v6, s37, v5
    s_waitcnt lgkmcnt(0)
    s_barrier
    ds_read_b32 v4, v6
    s_waitcnt lgkmcnt(0)
    v_max_f32 v3, v3, v4""")
    for c in range(3): dma(c)
    a("""s_waitcnt vmcnt(4)
    s_barrier
    s_branch Lk2_setci""")
    a.label("Lk2_end")
    a("s_endpgm")
    return a.text(), 200, EXCH + 2048
```

```python
from asmlib import *
import math, struct
from gen_common import *

def ar(a, n=1):
    return f"a{a}" if n == 1 else f"a[{a}:{a+n-1}]"

def gen_k3():
    a = Asm()
    R = 452 * 64
    OF = 16
    ACC = 144
    WF = 176
    T = 192
    a("""s_cmp_ge_u32 s2, 224
    s_cbranch_scc1 Lk3_end
    s_load_dwordx2 s[4:5], s[0:1], 16
    s_load_dwordx2 s[6:7], s[0:1], 40
    s_load_dwordx2 s[8:9], s[0:1], 56
    s_load_dwordx2 s[12:13], s[0:1], 72
    s_mov_b32 s3, 0x24924925
    s_mul_hi_u32 s32, s2, s3
    s_mul_i32 s33, s32, 7
    s_sub_u32 s33, s2, s33             ; fb
    v_lshrrev_b32 v3, 6, v0
    v_and_b32 v2, 63, v0
    v_readfirstlane_b32 s34, v3        ; w
    v_lshlrev_b32 v1, 4, v2
    s_waitcnt lgkmcnt(0)
    s_and_b32 s35, s34, 1
    s_lshr_b32 s36, s34, 1
    s_lshl_b32 s37, s32, 1
    s_add_u32 s37, s37, s35
    s_lshl_b32 s38, s33, 1
    s_add_u32 s39, s38, s35
    s_add_u32 s38, s38, s36
    s_cmp_eq_u32 s36, 0
    s_cselect_b32 s4, s4, s6
    s_cselect_b32 s5, s5, s7""")
    srd(a, 16, 4, 448 * 896)
    srd(a, 20, 12, WS_USED)
    srd(a, 24, 8, 2048 * 896)
    a(f"""v_lshrrev_b32 v3, 2, v2
    v_mul_u32_u24 v4, 896, v3
    v_and_b32 v3, 3, v2
    v_lshlrev_b32 v3, 4, v3
    v_add_u32 v4, v4, v3
    s_mul_i32 s40, s34, {R}
    s_lshl_b32 s41, s39, 6""")
    for i in range(28):
        a(f"""s_add_u32 m0, s40, {i*1024}
        s_add_u32 s42, s41, {i*16*896}
        buffer_load_dwordx4 v4, s[16:19], s42 offen lds""")
    a(f"""v_lshlrev_b32 v5, 2, v2
    s_add_u32 s42, s40, {448*64}
    v_add_u32 v5, s42, v5
    v_mov_b32 v6, 0
    ds_write_b32 v5, v6
    v_and_b32 v3, 31, v2
    v_lshlrev_b32 v5, 2, v3
    s_lshl_b32 s42, s37, 7
    s_add_u32 s42, s42, {G_OFF}
    buffer_load_dword v14, v5, s[20:23], s42 offen
    s_lshl_b32 s42, s37, 15
    s_add_u32 s42, s42, {O_OFF}
    s_add_u32 s43, s42, {2*MB}""")
    for n in range(32):
        o = n * 1024
        if n % 4 == 0 and n:
            a(f"s_add_u32 s42, s42, 4096")
        a(f"buffer_load_dwordx4 {vr(OF+4*n,4)}, v1, s[20:23], s42 offen offset:{(n%4)*1024}")
    a(f"""v_and_b32 v3, 31, v2
    v_lshrrev_b32 v5, 5, v2
    v_lshlrev_b32 v6, 8, v5            ; hh*4*64
    v_and_b32 v5, 15, v2
    v_lshrrev_b32 v5, 2, v5
    v_lshlrev_b32 v5, 6, v5
    v_add_u32 v6, v6, v5
    v_lshrrev_b32 v5, 4, v2
    v_and_b32 v5, 1, v5
    v_lshlrev_b32 v5, 5, v5
    v_add_u32 v6, v6, v5
    v_and_b32 v5, 3, v2
    v_lshlrev_b32 v5, 3, v5
    v_add_u32 v6, v6, v5
    s_mul_i32 s42, s36, {R}
    v_add_u32 v6, s42, v6
    v_add_u32 v7, {2*R}, v6
    s_lshl_b32 s42, s37, 5
    v_add_u32 v3, s42, v3
    v_mul_u32_u24 v8, 896, v3
    v_lshrrev_b32 v5, 5, v2
    v_lshlrev_b32 v5, 3, v5
    v_add_u32 v8, v8, v5
    s_lshl_b32 s44, s38, 6
    s_waitcnt vmcnt(33) lgkmcnt(0)
    s_barrier""")
    for n in range(32):
        if n % 4 == 0 and n:
            a(f"s_add_u32 s43, s43, 4096")
        a(f"buffer_load_dwordx4 {ar(4*n,4)}, v1, s[20:23], s43 offen offset:{(n%4)*1024}")

    NB = 4
    steps = [(t, n) for t in range(2) for n in range(32)]
    def rd(i):
        t, n = steps[i]
        h, ks = n >> 1, n & 1
        b = WF + (i % NB) * 4
        off = (h * 28 + 16 * ks) * 64
        a(f"ds_read_b64_tr_b16 {vr(b,2)}, v{6+t} offset:{off}")
        a(f"ds_read_b64_tr_b16 {vr(b+2,2)}, v{6+t} offset:{off+512}")
    for i in range(NB - 1): rd(i)
    for i in range(64):
        t, n = steps[i]
        if i + NB - 1 < 64: rd(i + NB - 1)
        rem = min(NB - 1, 63 - i)
        a(f"s_waitcnt vmcnt({63-i}) lgkmcnt({2*rem})")
        b = WF + (i % NB) * 4
        o = vr(OF + 4 * n, 4) if t == 0 else ar(4 * n, 4)
        c = "0" if n == 0 else vr(ACC + 16 * t, 16)
        a(f"v_mfma_f32_32x32x16_bf16 {vr(ACC+16*t,16)}, {vr(b,4)}, {o}, {c}")
    a(f"""s_waitcnt vmcnt(0)
    v_sub_f32 v15, 1.0, v14
    v_cvt_pk_bf16_f32 v15, v15, v15
    v_lshlrev_b32 v15, 16, v15
    s_mov_b32 s45, 0xffff0000
    s_nop 12""")
    A, B = ACC, ACC + 16
    for p in range(8):
        a(f"v_cvt_pk_bf16_f32 v{T+p}, v{A+2*p}, v{A+2*p+1}")
        a(f"v_cvt_pk_bf16_f32 v{T+8+p}, v{B+2*p}, v{B+2*p+1}")
    for p in range(8):
        a(f"v_lshlrev_b32 v{A+2*p}, 16, v{T+p}")
        a(f"v_and_b32 v{A+2*p+1}, s45, v{T+p}")
        a(f"v_lshlrev_b32 v{B+2*p}, 16, v{T+8+p}")
        a(f"v_and_b32 v{B+2*p+1}, s45, v{T+8+p}")
    for r in range(16):
        a(f"v_mul_f32 v{A+r}, v14, v{A+r}")
        a(f"v_mul_f32 v{B+r}, v15, v{B+r}")
    for p in range(8):
        a(f"v_cvt_pk_bf16_f32 v{T+p}, v{A+2*p}, v{A+2*p+1}")
        a(f"v_cvt_pk_bf16_f32 v{T+8+p}, v{B+2*p}, v{B+2*p+1}")
    for p in range(8):
        a(f"v_lshlrev_b32 v{A+2*p}, 16, v{T+p}")
        a(f"v_and_b32 v{A+2*p+1}, s45, v{T+p}")
        a(f"v_lshlrev_b32 v{B+2*p}, 16, v{T+8+p}")
        a(f"v_and_b32 v{B+2*p+1}, s45, v{T+8+p}")
    for r in range(16):
        a(f"v_add_f32 v{A+r}, v{A+r}, v{B+r}")
    for p in range(8):
        a(f"v_cvt_pk_bf16_f32 v{T+p}, v{A+2*p}, v{A+2*p+1}")
    for g in range(4):
        a(f"buffer_store_dwordx2 {vr(T+2*g,2)}, v8, s[24:27], s44 offen offset:{g*16}")
    a.label("Lk3_end")
    a("s_endpgm")
    return a.text(), 256 + 128, 4 * R
```

```python
import sys, math, struct
from asmlib import *

def f32bits(x):
    return struct.unpack("<I", struct.pack("<f", x))[0]

MB = 1 << 20
Q_OFF, K_OFF, V_OFF, O_OFF, G_OFF = 0, 4 * MB, 8 * MB, 12 * MB, 16 * MB
WS_USED = 16 * MB + 8192
CSCALE = (28 ** -0.5) * math.log2(math.e)

def srd(a, d, base, nbytes):
    a(f"""s_mov_b32 s{d}, s{base}
    s_and_b32 s{d+1}, s{base+1}, 0xffff
    s_mov_b32 s{d+2}, {nbytes}
    s_mov_b32 s{d+3}, 0x00020000""")

def gen_k1():
    a = Asm()
    XF = 16
    ACC = 128
    WF = 176
    PK = 200
    a("""s_cmp_ge_u32 s2, 256
    s_cbranch_scc1 Lk1_end
    s_load_dwordx2 s[4:5], s[0:1], 0
    s_load_dwordx2 s[6:7], s[0:1], 8
    s_load_dwordx2 s[8:9], s[0:1], 32
    s_load_dwordx2 s[10:11], s[0:1], 48
    s_load_dwordx2 s[12:13], s[0:1], 72
    s_and_b32 s32, s2, 7
    s_lshr_b32 s33, s2, 3
    s_and_b32 s34, s32, 1
    s_lshr_b32 s35, s32, 1
    s_and_b32 s36, s33, 3
    s_lshl_b32 s34, s34, 2
    s_add_u32 s34, s34, s36
    s_lshr_b32 s36, s33, 2
    s_lshl_b32 s35, s35, 3
    s_add_u32 s35, s35, s36
    s_lshr_b32 s36, s35, 4
    s_and_b32 s37, s35, 15
    v_lshrrev_b32 v1, 6, v0
    v_and_b32 v2, 63, v0
    v_readfirstlane_b32 s38, v1
    s_waitcnt lgkmcnt(0)""")
    srd(a, 16, 4, 2048 * 896)
    a("""s_cmp_eq_u32 s36, 0
    s_cselect_b32 s6, s6, s8
    s_cselect_b32 s7, s7, s9""")
    srd(a, 20, 6, 448 * 2688)
    srd(a, 24, 12, WS_USED)
    srd(a, 28, 10, 896)
    a("""s_lshl_b32 s39, s34, 3
    s_add_u32 s39, s39, s38            ; stile
    s_mul_i32 s40, s38, 43008          ; w*16*2688
    s_lshl_b32 s41, s38, 10            ; w*1024
    s_mul_i32 s42, s37, 56             ; h*56
    v_lshlrev_b32 v3, 1, v0
    buffer_load_ushort v15, v3, s[28:31], 0 offen
    v_lshrrev_b32 v3, 2, v2
    v_mul_u32_u24 v4, 2688, v3
    v_and_b32 v3, 3, v2
    v_lshlrev_b32 v3, 4, v3
    v_add_u32 v4, v4, v3""")
    for i in range(4):
        if i == 3:
            a("""s_cmp_lt_u32 s38, 4
            s_cbranch_scc0 Lk1_dma_done""")
        for j in range(3):
            a(f"""s_add_u32 s43, s40, {i*344064 + j*896}
            s_add_u32 s43, s43, s42
            s_add_u32 s44, s41, {j*28672 + i*8192}
            s_mov_b32 m0, s44
            s_nop 0
            buffer_load_dwordx4 v4, s[20:23], s43 offen lds""")
    a.label("Lk1_dma_done")
    a("""v_and_b32 v3, 31, v2
    s_lshl_b32 s43, s39, 5
    v_add_u32 v3, s43, v3
    v_mul_u32_u24 v5, 896, v3
    v_lshrrev_b32 v3, 5, v2
    v_lshlrev_b32 v3, 4, v3
    v_add_u32 v5, v5, v3""")
    for ks in range(28):
        a(f"buffer_load_dwordx4 {vr(XF+4*ks,4)}, v5, s[16:19], 0 offen offset:{ks*32}")
    a("""v_lshrrev_b32 v3, 5, v2
    v_lshlrev_b32 v6, 9, v3            ; hh*8*64
    v_and_b32 v3, 15, v2
    v_lshrrev_b32 v3, 2, v3
    v_lshlrev_b32 v3, 6, v3            ; r*64
    v_add_u32 v6, v6, v3
    v_lshrrev_b32 v3, 4, v2
    v_and_b32 v3, 1, v3
    v_lshlrev_b32 v3, 5, v3            ; colhalf*32
    v_add_u32 v6, v6, v3
    v_and_b32 v3, 3, v2
    v_lshlrev_b32 v3, 3, v3
    v_add_u32 v6, v6, v3
    v_add_u32 v7, 57344, v6
    v_lshlrev_b32 v8, 4, v2
    s_waitcnt vmcnt(28)
    s_barrier
    s_cmp_eq_u32 s35, 0
    s_cbranch_scc0 Lk1_nogate
    v_lshlrev_b32 v3, 6, v0
    v_add_u32 v3, 56, v3
    v_cmp_gt_u32 vcc, 448, v0
    s_and_saveexec_b64 s[46:47], vcc
    ds_write_b16 v3, v15
    s_mov_b64 exec, s[46:47]
    s_waitcnt lgkmcnt(0)
    s_barrier""")
    a.label("Lk1_nogate")
    def rd(ks):
        b = WF + (ks % 2) * 12
        for j in range(3):
            base = "v7" if j == 2 else "v6"
            off = (0 if j == 2 else j * 28672) + ks * 1024
            a(f"ds_read_b64_tr_b16 {vr(b+4*j,2)}, {base} offset:{off}")
            a(f"ds_read_b64_tr_b16 {vr(b+4*j+2,2)}, {base} offset:{off+256}")
    rd(0)
    for ks in range(28):
        if ks + 1 < 28:
            rd(ks + 1)
        a(f"s_waitcnt vmcnt({27-ks}) lgkmcnt({6 if ks+1<28 else 0})")
        b = WF + (ks % 2) * 12
        x = vr(XF + 4 * ks, 4)
        for j in range(3):
            c = "0" if ks == 0 else vr(ACC + 16 * j, 16)
            if j < 2:
                a(f"v_mfma_f32_32x32x16_bf16 {vr(ACC+16*j,16)}, {vr(b+4*j,4)}, {x}, {c}")
            else:
                a(f"v_mfma_f32_32x32x16_bf16 {vr(ACC+16*j,16)}, {x}, {vr(b+4*j,4)}, {c}")
    a(f"""s_mov_b32 s48, 0xffffffff
    s_mov_b32 s49, 0
    s_mov_b32 s50, 0x0fffffff
    s_mov_b32 s51, 0x0fffffff          ; (l&31)<28 mask
    s_mov_b32 s52, {f32bits(CSCALE)}
    v_and_b32 v3, 31, v2
    v_mov_b32 v9, 0x3f803f80
    v_cmp_eq_u32 vcc, 28, v3
    s_nop 1
    v_cndmask_b32 v9, 0, v9, vcc
    s_lshl_b32 s43, s35, 6
    s_add_u32 s43, s43, s39
    s_lshl_b32 s43, s43, 11            ; (th*64+stile)*2048
    s_nop 7
    s_cmp_eq_u32 s35, 0
    s_cbranch_scc0 Lk1_nogate2""")
    a(f"""v_cvt_pk_bf16_f32 v10, v{ACC+12}, v{ACC+12}
    v_lshlrev_b32 v10, 16, v10
    v_mul_f32 v10, {f32bits(-math.log2(math.e))}, v10
    v_exp_f32 v10, v10
    s_nop 0
    v_add_f32 v10, 1.0, v10
    v_rcp_f32 v10, v10
    s_nop 0
    v_cvt_pk_bf16_f32 v10, v10, v10
    v_lshlrev_b32 v10, 16, v10
    v_and_b32 v3, 31, v2
    v_lshlrev_b32 v3, 2, v3
    s_lshl_b32 s44, s39, 7
    s_add_u32 s44, s44, {G_OFF}
    s_mov_b64 s[46:47], exec
    s_mov_b32 exec_lo, 0
    buffer_store_dword v10, v3, s[24:27], s44 offen
    s_mov_b64 exec, s[46:47]""")
    a.label("Lk1_nogate2")
    for j in range(3):
        A = ACC + 16 * j
        if j == 0:
            for r in range(16):
                a(f"v_mul_f32 v{A+r}, s52, v{A+r}")
        for p in range(8):
            a(f"v_cvt_pk_bf16_f32 v{PK+p}, v{A+2*p}, v{A+2*p+1}")
        if j < 2:
            a(f"v_cndmask_b32 v{PK+6}, 0, v{PK+6}, s[48:49]")
            a(f"v_cndmask_b32 v{PK+7}, 0, v{PK+7}, s[48:49]")
        else:
            for p in range(8):
                a(f"v_cndmask_b32 v{PK+p}, v9, v{PK+p}, s[50:51]")
        a(f"s_add_u32 s44, s43, {[Q_OFF,K_OFF,V_OFF][j]}")
        a(f"buffer_store_dwordx4 {vr(PK,4)}, v8, s[24:27], s44 offen")
        a(f"buffer_store_dwordx4 {vr(PK+4,4)}, v8, s[24:27], s44 offen offset:1024")
        if j < 2:
            a("s_nop 1")
            PK += 8
    a.label("Lk1_end")
    a("s_endpgm")
    return a.text(), 224

def build(kernels):
    hdr = open("gated_mix__sliding_local_dilated__mha_block__prompt.s.ref").read().split("; Override")[0]
    out = hdr
    for (name, grid, block, lds, _, _) in kernels:
        out += f"; @launch kernel={name} grid=({grid},1,1) block=({block},1,1) lds={lds}\n"
    out += '.amdgcn_target "amdgcn-amd-amdhsa--gfx950"\n.text\n'
    for (name, grid, block, lds, body, vg) in kernels:
        out += kernel_header(name) + body
    out += '.section .rodata,"a"\n.p2align 6\n'
    for (name, grid, block, lds, body, vg) in kernels:
        out += ".p2align 6\n" + kernel_desc(name, vg, accum=(256 if vg > 256 else None))
    return out

if __name__ == "__main__":
    k1, v1 = gen_k1()
    from gen_k2 import gen_k2
    k2, v2, lds2 = gen_k2()
    from gen_k3 import gen_k3
    k3, v3, lds3 = gen_k3()
    kernels = [("qkv_kernel", 256, 512, 86016, k1, v1), ("attn_kernel", 256, 512, lds2, k2, v2), ("proj_kernel", 224, 256, lds3, k3, v3)]
    dst = sys.argv[1] if len(sys.argv) > 1 else "gated_mix__sliding_local_dilated__mha_block__prompt.s"
    open(dst, "w").write(build(kernels))
```

```python
import math, struct
def f32bits(x):
    return struct.unpack("<I", struct.pack("<f", x))[0]
MB = 1 << 20
Q_OFF, K_OFF, V_OFF, O_OFF, G_OFF = 0, 4 * MB, 8 * MB, 12 * MB, 16 * MB
WS_USED = 16 * MB + 8192
CSCALE = (28 ** -0.5) * math.log2(math.e)
def srd(a, d, base, nbytes):
    a(f"""s_mov_b32 s{d}, s{base}
    s_and_b32 s{d+1}, s{base+1}, 0xffff
    s_mov_b32 s{d+2}, {nbytes}
    s_mov_b32 s{d+3}, 0x00020000""")

import os
STAMP = os.environ.get("STAMP", "0") == "1"
def stamp(a, n):
    if STAMP:
        a(f"""s_memtime s[{80+2*n}:{81+2*n}]""")
        if n == 0:
            a("s_memrealtime s[96:97]")
_sfc = [0]
def stamp_flush(a, n, wave_sgpr):
    _sfc[0] += 1; uid = _sfc[0]
    if STAMP:
        a(f"""s_waitcnt lgkmcnt(0)
        s_load_dwordx2 s[76:77], s[0:1], 64
        s_waitcnt lgkmcnt(0)
        s_mov_b32 s72, s76
        s_and_b32 s73, s77, 0xffff
        s_mov_b32 s74, 256
        s_mov_b32 s75, 0x00020000
        s_cmp_eq_u32 s{wave_sgpr}, 0
        s_cbranch_scc0 Lst_skip_{uid}
        s_mov_b32 s78, 0
        s_cmp_eq_u32 s2, 0
        s_cbranch_scc1 Lst_go_{uid}
        s_mov_b32 s78, 64
        s_cmp_eq_u32 s2, 101
        s_cbranch_scc0 Lst_skip_{uid}""")
        a.label(f"Lst_go_{uid}")
        a("v_mov_b32 v250, 0")
        a(f"""s_memrealtime s[98:99]
        s_waitcnt lgkmcnt(0)
        s_sub_u32 s79, s98, s96
        v_mov_b32 v251, s79
        buffer_store_dword v251, v250, s[72:75], s78 offen offset:28
        v_mov_b32 v251, s96
        buffer_store_dword v251, v250, s[72:75], s78 offen offset:24""")
        for i in range(n):
            a(f"""s_sub_u32 s79, s{80+2*i}, s80
            v_mov_b32 v251, s79
            buffer_store_dword v251, v250, s[72:75], s78 offen offset:{4*i}""")
        a.label(f"Lst_skip_{uid}")


SF = (' ' + os.environ['SF']) if os.environ.get('SF') else ''
```

```python
from asmlib import *
import math, struct, os
from gen_common import *

def gen_k1():
    a = Asm()
    ACC = 16
    WF = 64
    XFR = 88
    PK = 96
    XA = 120
    GF = 128
    XS = 32768; WB = 98304; WS = 12288
    GA = WB + 3 * WS
    a("""s_cmp_ge_u32 s2, 256
    s_cbranch_scc1 Lk1_end
    s_load_dwordx2 s[4:5], s[0:1], 0""")
    stamp(a, 0)
    a("""s_load_dwordx2 s[6:7], s[0:1], 8
    s_load_dwordx2 s[8:9], s[0:1], 32
    s_load_dwordx2 s[10:11], s[0:1], 48
    s_load_dwordx2 s[12:13], s[0:1], 72
    s_and_b32 s32, s2, 7
    s_lshr_b32 s33, s2, 3
    s_and_b32 s34, s32, 1
    s_lshr_b32 s35, s32, 1
    s_and_b32 s36, s33, 3
    s_lshl_b32 s34, s34, 2
    s_add_u32 s34, s34, s36
    s_lshr_b32 s36, s33, 2
    s_lshl_b32 s35, s35, 3
    s_add_u32 s35, s35, s36
    s_lshr_b32 s36, s35, 4
    s_and_b32 s37, s35, 15
    v_lshrrev_b32 v1, 6, v0
    v_and_b32 v2, 63, v0
    v_readfirstlane_b32 s38, v1
    s_waitcnt lgkmcnt(0)""")
    srd(a, 16, 4, 2048 * 896)
    a("""s_cmp_eq_u32 s36, 0
    s_cselect_b32 s6, s6, s8
    s_cselect_b32 s7, s7, s9""")
    srd(a, 20, 6, 448 * 2688)
    srd(a, 24, 12, WS_USED)
    srd(a, 28, 10, 896)
    a(f"""s_lshl_b32 s39, s34, 3
    s_add_u32 s39, s39, s38            ; stile
    s_mul_i32 s40, s39, {32*896}
    s_lshl_b32 s41, s38, 12            ; w*4096 (x LDS)
    s_mul_i32 s42, s37, 56             ; h*56
    s_mul_i32 s45, s38, {24*64}
    s_add_u32 s45, s45, {WB}
    v_lshrrev_b32 v3, 3, v2
    v_mul_u32_u24 v4, 896, v3
    v_and_b32 v3, 7, v2
    v_lshrrev_b32 v6, 4, v2
    v_xor_b32 v3, v3, v6
    v_lshlrev_b32 v6, 4, v3
    v_xor_b32 v7, 64, v6
    v_add_u32 v5, v4, v7
    v_add_u32 v4, v4, v6
    s_mul_i32 s43, s38, 24
    v_lshrrev_b32 v3, 2, v2
    v_add_u32 v3, s43, v3              ; r
    v_and_b32 v8, 3, v2
    v_lshlrev_b32 v8, 4, v8            ; c*16
    v_lshrrev_b32 v9, 6, v3            ; j
    v_and_b32 v10, 63, v3              ; k
    v_mul_u32_u24 v6, 2688, v10
    v_mul_u32_u24 v9, 896, v9
    v_add3_u32 v6, v6, v9, v8
    v_add_u32 v3, 16, v3
    v_lshrrev_b32 v9, 6, v3
    v_and_b32 v10, 63, v3
    v_mul_u32_u24 v7, 2688, v10
    v_mul_u32_u24 v9, 896, v9
    v_add3_u32 v7, v7, v9, v8
    s_cmp_eq_u32 s35, s38
    s_cselect_b32 s53, 1, 0
    v_mov_b32 v15, 0
    v_lshrrev_b32 v3, 5, v2
    v_lshlrev_b32 v13, 4, v3
    v_add_u32 v13, {GA}, v13
    v_lshlrev_b32 v12, 4, v2
    s_cmp_eq_u32 s53, 1
    s_cbranch_scc0 Lk1_nog0
    s_mov_b32 m0, {GA}
    s_nop 0
    buffer_load_dwordx4 v12, s[28:31], 0 offen lds""")
    a.label("Lk1_nog0")
    def dma(kc):
        st = kc % 3
        for i in range(4):
            a(f"""s_add_u32 m0, s41, {st*XS + i*1024}
            s_add_u32 s43, s40, {i*8*896 + kc*128}
            buffer_load_dwordx4 v{4+(i&1)}, s[16:19], s43 offen lds""")
        a(f"""s_add_u32 m0, s45, {st*WS}
        s_add_u32 s43, s42, {kc*64*2688}
        buffer_load_dwordx4 v6, s[20:23], s43 offen lds
        s_add_u32 m0, s45, {st*WS+1024}
        s_mov_b32 exec_hi, 0
        buffer_load_dwordx4 v7, s[20:23], s43 offen lds
        s_mov_b32 exec_hi, -1""")
    dma(0); dma(1)
    a(f"""v_and_b32 v3, 31, v2
    v_lshrrev_b32 v8, 1, v3
    v_and_b32 v8, 7, v8                ; g
    v_lshrrev_b32 v9, 5, v2            ; hh
    v_xor_b32 v8, v8, v9
    v_lshlrev_b32 v8, 4, v8
    v_lshlrev_b32 v3, 7, v3
    v_add3_u32 v{XA}, v3, v8, s41
    v_xor_b32 v{XA+1}, 32, v{XA}
    v_xor_b32 v{XA+2}, 64, v{XA}
    v_xor_b32 v{XA+3}, 96, v{XA}
    v_add_u32 v{XA+4}, {2*XS}, v{XA}
    v_add_u32 v{XA+5}, {2*XS}, v{XA+1}
    v_add_u32 v{XA+6}, {2*XS}, v{XA+2}
    v_add_u32 v{XA+7}, {2*XS}, v{XA+3}
    v_lshrrev_b32 v3, 5, v2
    v_lshlrev_b32 v11, 9, v3            ; hh*8*64
    v_and_b32 v3, 15, v2
    v_lshrrev_b32 v3, 2, v3
    v_lshlrev_b32 v3, 6, v3            ; r*64
    v_add_u32 v11, v11, v3
    v_lshrrev_b32 v3, 4, v2
    v_and_b32 v3, 1, v3
    v_lshlrev_b32 v3, 5, v3            ; colhalf*32
    v_add_u32 v11, v11, v3
    v_and_b32 v3, 3, v2
    v_lshlrev_b32 v3, 3, v3
    v_add_u32 v11, v11, v3
    v_add_u32 v11, {WB}, v11
    v_lshlrev_b32 v12, 4, v2""")
    def rd(ks):
        kc, m = ks >> 2, ks & 3
        st = kc % 3
        b = WF + (ks % 2) * 12
        xa = XA + m + (4 if st == 2 else 0)
        xo = 0 if st == 2 else st * XS
        a(f"""s_cmp_eq_u32 s53, 1
        s_cbranch_scc0 Lk1_gr{ks}
        ds_read_b128 {vr(GF+4*(ks%2),4)}, v13 offset:{ks*32}""")
        a.label(f"Lk1_gr{ks}")
        a(f"ds_read_b128 {vr(XFR+4*(ks%2),4)}, v{xa} offset:{xo}")
        for j in range(3):
            off = st * WS + j * 4096 + m * 1024
            a(f"ds_read_b64_tr_b16 {vr(b+4*j,2)}, v11 offset:{off}")
            a(f"ds_read_b64_tr_b16 {vr(b+4*j+2,2)}, v11 offset:{off+256}")
    for kc in range(7):
        a(f"s_waitcnt vmcnt({6 if kc < 6 else 0})")
        a("s_barrier")
        if kc == 0: stamp(a, 1)
        if kc + 2 < 7: dma(kc + 2)
        rd(4 * kc)
        for m in range(4):
            ks = 4 * kc + m
            if m < 3:
                rd(ks + 1)
            a(f"s_waitcnt lgkmcnt({7 if m<3 else 0})")
            b = WF + (ks % 2) * 12
            x = vr(XFR + 4 * (ks % 2), 4)
            for j in range(3):
                c = "0" if ks == 0 else vr(ACC + 16 * j, 16)
                if j < 2:
                    a(f"v_mfma_f32_32x32x16_bf16 {vr(ACC+16*j,16)}, {vr(b+4*j,4)}, {x}, {c}")
                else:
                    a(f"v_mfma_f32_32x32x16_bf16 {vr(ACC+16*j,16)}, {x}, {vr(b+4*j,4)}, {c}")
            a(f"""s_cmp_eq_u32 s53, 1
            s_cbranch_scc0 Lk1_ng{ks}""")
            for q in range(4):
                a(f"v_dot2_f32_bf16 v15, v{XFR+4*(ks%2)+q}, v{GF+4*(ks%2)+q}, v15")
            a.label(f"Lk1_ng{ks}")
    stamp(a, 2)
    a(f"""s_mov_b32 s48, 0xffffffff
    s_mov_b32 s49, 0
    s_mov_b32 s50, 0x0fffffff
    s_mov_b32 s51, 0x0fffffff          ; (l&31)<28 mask
    s_mov_b32 s52, {f32bits(CSCALE)}
    v_and_b32 v3, 31, v2
    v_mov_b32 v9, 0x3f803f80
    v_cmp_eq_u32 vcc, 28, v3
    s_nop 1
    v_cndmask_b32 v9, 0, v9, vcc
    s_lshl_b32 s43, s35, 6
    s_add_u32 s43, s43, s39
    s_lshl_b32 s43, s43, 11            ; (th*64+stile)*2048
    s_nop 7
    s_cmp_eq_u32 s53, 1
    s_cbranch_scc0 Lk1_nogate2""")
    a(f"""v_mov_b32 v10, v15
    s_nop 1
    v_permlane32_swap_b32 v10, v15
    v_add_f32 v10, v10, v15
    v_cvt_pk_bf16_f32 v10, v10, v10
    v_lshlrev_b32 v10, 16, v10
    v_mul_f32 v10, {f32bits(-math.log2(math.e))}, v10
    v_exp_f32 v10, v10
    s_nop 0
    v_add_f32 v10, 1.0, v10
    v_rcp_f32 v10, v10
    s_nop 0
    v_cvt_pk_bf16_f32 v10, v10, v10
    v_lshlrev_b32 v10, 16, v10
    v_and_b32 v3, 31, v2
    v_lshlrev_b32 v3, 2, v3
    s_lshl_b32 s44, s39, 7
    s_add_u32 s44, s44, {G_OFF}
    s_mov_b32 exec_lo, 0
    buffer_store_dword v10, v3, s[24:27], s44 offen
    s_mov_b32 exec_lo, -1""")
    a.label("Lk1_nogate2")
    for j in range(3):
        A = ACC + 16 * j
        if j == 0:
            for r in range(16):
                a(f"v_mul_f32 v{A+r}, s52, v{A+r}")
        for p in range(8):
            a(f"v_cvt_pk_bf16_f32 v{PK+p}, v{A+2*p}, v{A+2*p+1}")
        if j < 2:
            a(f"v_cndmask_b32 v{PK+6}, 0, v{PK+6}, s[48:49]")
            a(f"v_cndmask_b32 v{PK+7}, 0, v{PK+7}, s[48:49]")
        else:
            for p in range(8):
                a(f"v_cndmask_b32 v{PK+p}, v9, v{PK+p}, s[50:51]")
        a(f"s_add_u32 s44, s43, {[Q_OFF,K_OFF,V_OFF][j]}")
        a(f"buffer_store_dwordx4 {vr(PK,4)}, v12, s[24:27], s44 offen{SF}")
        a(f"buffer_store_dwordx4 {vr(PK+4,4)}, v12, s[24:27], s44 offen offset:1024{SF}")
        PK += 8
    if STAMP:
        a("s_waitcnt vmcnt(0)")
    stamp(a, 3)
    stamp_flush(a, 4, 38)
    a.label("Lk1_end")
    a("s_endpgm")
    return a.text(), 256 if STAMP else 136, GA + 1024
```

```python
from asmlib import *
import math, struct
from gen_common import *

class Q:
    def __init__(self): self.q = []
    def push(self, tag): self.q.append(tag)
    def need(self, tag):
        last = -1
        for i, t in enumerate(self.q):
            if t == tag: last = i
        if last < 0: return None
        n = len(self.q) - 1 - last
        self.q = self.q[last + 1:]
        return n

def gen_k2():
    a = Asm()
    QF, KF, VF, S0, S1, O, CI = 16, 24, 32, 48, 64, 80, 96
    PB = [40, 112]
    VBK, VBV = 120, 121
    LQ, LK0, LK1, LV0, LV1 = 124, 132, 140, 148, 152
    T = 160
    NS = 5
    VREG = NS * 8192
    COMB = 2 * VREG; FLAG = COMB + 16384; EXCH = FLAG + 256
    S = [S0, S1]
    P = PB[0]
    a("""s_cmp_ge_u32 s2, 256
    s_cbranch_scc1 Lk2_end
    s_load_dwordx2 s[12:13], s[0:1], 72""")
    stamp(a, 0)
    a(f"""s_and_b32 s32, s2, 7
    s_lshr_b32 s33, s2, 3
    s_lshl_b32 s32, s32, 1
    s_and_b32 s37, s33, 1
    s_add_u32 s32, s32, s37            ; h
    s_lshr_b32 s33, s33, 1             ; qb
    v_lshrrev_b32 v3, 6, v0
    v_and_b32 v2, 63, v0
    v_readfirstlane_b32 s34, v3        ; w
    v_lshlrev_b32 v1, 4, v2            ; lane*16
    s_mov_b32 s70, 0
    s_and_b32 s37, s34, 3
    s_lshl_b32 s35, s33, 2
    s_add_u32 s35, s35, s37            ; qt
    s_lshr_b32 s36, s34, 2             ; ksp
    s_lshl_b32 s37, s36, 12
    v_add_u32 v{VBK}, s37, v1
    v_add_u32 v{VBV}, {VREG}, v{VBK}
    s_waitcnt lgkmcnt(0)""")
    srd(a, 16, 12, WS_USED)
    a(f"""s_add_u32 s37, s32, 16
    s_lshl_b32 s38, s37, 6
    s_add_u32 s38, s38, s35
    s_lshl_b32 s38, s38, 11
    buffer_load_dwordx4 {vr(QF,4)}, v1, s[16:19], s38 offen
    buffer_load_dwordx4 {vr(QF+4,4)}, v1, s[16:19], s38 offen offset:1024
    s_lshl_b32 s40, s37, 17            ; (16+h)*131072
    s_lshl_b32 s41, s34, 10            ; w*1024
    s_add_u32 s40, s40, s41
    s_add_u32 s42, s40, {V_OFF}        ; V base
    s_add_u32 s40, s40, {K_OFF}        ; K base
    s_mov_b32 s48, 0xffffffff
    s_mov_b32 s49, 0""")
    def local_loads():
        a(f"""s_cmp_eq_u32 s36, 1
        s_cbranch_scc0 Lk2_noll
        s_lshl_b32 s38, s32, 6
        s_add_u32 s39, s38, s35            ; h*64+qt
        s_sub_u32 s45, s35, 1
        s_max_i32 s45, s45, 0
        s_add_u32 s45, s38, s45            ; h*64+prev
        s_lshl_b32 s39, s39, 11
        s_lshl_b32 s45, s45, 11
        buffer_load_dwordx4 {vr(LQ,4)}, v1, s[16:19], s39 offen
        buffer_load_dwordx4 {vr(LQ+4,4)}, v1, s[16:19], s39 offen offset:1024
        s_add_u32 s46, s45, {K_OFF}
        buffer_load_dwordx4 {vr(LK0,4)}, v1, s[16:19], s46 offen
        buffer_load_dwordx4 {vr(LK0+4,4)}, v1, s[16:19], s46 offen offset:1024
        s_add_u32 s46, s39, {K_OFF}
        buffer_load_dwordx4 {vr(LK1,4)}, v1, s[16:19], s46 offen
        buffer_load_dwordx4 {vr(LK1+4,4)}, v1, s[16:19], s46 offen offset:1024
        s_add_u32 s46, s45, {V_OFF}
        buffer_load_dwordx4 {vr(LV0,4)}, v1, s[16:19], s46 offen offset:1024
        s_add_u32 s46, s39, {V_OFF}
        buffer_load_dwordx4 {vr(LV1,4)}, v1, s[16:19], s46 offen
        buffer_load_dwordx4 {vr(LV1+4,4)}, v1, s[16:19], s46 offen offset:1024""")
        a.label("Lk2_noll")
    def dma(c):
        slot = c % NS
        a(f"""s_add_u32 s43, s40, {c*8192}
        s_add_u32 m0, s41, {slot*8192}
        s_add_u32 s44, s42, {c*8192}
        buffer_load_dwordx4 v1, s[16:19], s43 offen lds
        s_add_u32 m0, s41, {VREG+slot*8192}
        s_nop 0
        buffer_load_dwordx4 v1, s[16:19], s44 offen lds""")
    for c in range(3): dma(c)

    def finalize(Oreg, soff, check=False):
        a(f"""v_mov_b32 v3, v{Oreg+12}
        v_mov_b32 v4, v{Oreg+12}
        s_nop 1
        v_permlane32_swap_b32 v3, v4
        v_rcp_f32 v5, v4""")
        if check:
            a(f"""v_mov_b32 v6, 0.5
            v_mov_b32 v7, {f32bits(2.0**40)}
            v_cmp_nge_f32 vcc, v4, v6
            v_cmp_nle_f32 s[60:61], v4, v7
            s_or_b64 s[60:61], s[60:61], vcc""")
        else:
            a("s_nop 0")
        for r in range(16):
            a(f"v_mul_f32 v{Oreg+r}, v5, v{Oreg+r}")
        for p in range(8):
            a(f"v_cvt_pk_bf16_f32 v{P+p}, v{Oreg+2*p}, v{Oreg+2*p+1}")
        a(f"""v_cndmask_b32 v{P+6}, 0, v{P+6}, s[48:49]
        v_cndmask_b32 v{P+7}, 0, v{P+7}, s[48:49]
        buffer_store_dwordx4 {vr(P,4)}, v1, s[16:19], {soff} offen
        buffer_store_dwordx4 {vr(P+4,4)}, v1, s[16:19], {soff} offen offset:1024""")

    a(f"""s_waitcnt vmcnt(4)
    s_barrier""")
    stamp(a, 1)
    a(f"""ds_read_b128 {vr(KF,4)}, v1
    ds_read_b128 {vr(KF+4,4)}, v1 offset:1024
    s_waitcnt lgkmcnt(0)
    v_mfma_f32_32x32x16_bf16 {vr(S0,16)}, {vr(KF,4)}, {vr(QF,4)}, 0
    v_mfma_f32_32x32x16_bf16 {vr(S0,16)}, {vr(KF+4,4)}, {vr(QF+4,4)}, {vr(S0,16)}""")
    for r in range(16):
        a(f"v_mov_b32 v{O+r}, 0")
    a(f"v_max3_f32 v3, v{S0}, v{S0+1}, v{S0+2}")
    for n in range(3, 15, 2):
        a(f"v_max3_f32 v3, v3, v{S0+n}, v{S0+n+1}")
    a(f"""v_max_f32 v3, v3, v{S0+15}
    v_mov_b32 v4, v3
    s_nop 1
    v_permlane32_swap_b32 v3, v4
    v_max_f32 v3, v3, v4""")
    a.label("Lk2_setci")
    stamp(a, 2)
    for r in range(16):
        a(f"v_sub_f32 v{CI+r}, 0, v3")
    lq = Q(); vq = Q()
    vq.push("c1"); vq.push("c1"); vq.push("c2"); vq.push("c2")
    def off(i):
        return ((i >> 1) % NS) * 8192 + (i & 1) * 2048
    def kread(i):
        a(f"ds_read_b128 {vr(KF,4)}, v{VBK} offset:{off(i)}")
        a(f"ds_read_b128 {vr(KF+4,4)}, v{VBK} offset:{off(i)+1024}")
        lq.push(f"k{i}"); lq.push(f"k{i}")
    def vread(i):
        a(f"ds_read_b128 {vr(VF,4)}, v{VBV} offset:{off(i)}")
        a(f"ds_read_b128 {vr(VF+4,4)}, v{VBV} offset:{off(i)+1024}")
        lq.push(f"v{i}"); lq.push(f"v{i}")
    def wait(tag):
        n = lq.need(tag)
        if n is not None: a(f"s_waitcnt lgkmcnt({n})")
    def qk_a(i): a(f"v_mfma_f32_32x32x16_bf16 {vr(S[i%2],16)}, {vr(KF,4)}, {vr(QF,4)}, {vr(CI,16)}")
    def qk_b(i): a(f"v_mfma_f32_32x32x16_bf16 {vr(S[i%2],16)}, {vr(KF+4,4)}, {vr(QF+4,4)}, {vr(S[i%2],16)}")
    def pv_a(i): a(f"v_mfma_f32_32x32x16_bf16 {vr(O,16)}, {vr(VF,4)}, {vr(PB[i%2],4)}, {vr(O,16)}")
    def pv_b(i): a(f"v_mfma_f32_32x32x16_bf16 {vr(O,16)}, {vr(VF+4,4)}, {vr(PB[i%2]+4,4)}, {vr(O,16)}")
    kread(0)
    wait("k0")
    qk_a(0); qk_b(0)
    kread(1)
    a("s_nop 9")
    NT = 32
    for i in range(NT):
        c = i >> 1
        if i % 2 == 0:
            n = vq.need(f"c{c+1}")
            if n is not None:
                a(f"s_waitcnt vmcnt({n})")
                a("s_barrier")
            if c + 3 < 16:
                dma(c + 3); vq.push(f"c{c+3}"); vq.push(f"c{c+3}")
        if i == 8:
            a("s_cmp_lg_u32 s70, 0")
            a("s_cbranch_scc1 Lk2_noll")
            local_loads()
        s = S[i % 2]; pb = PB[i % 2]
        def ex(j):
            a(f"v_exp_f32 v{s+j}, v{s+j}")
            if j % 2 == 1 and j >= 3:
                p = (j - 3) // 2
                a(f"v_cvt_pk_bf16_f32 v{pb+p}, v{s+2*p}, v{s+2*p+1}")
        if i + 1 < NT:
            wait(f"k{i+1}"); qk_a(i + 1)
        for j in range(0, 4): ex(j)
        if i + 1 < NT:
            qk_b(i + 1)
            if i + 2 < NT: kread(i + 2)
        for j in range(4, 8): ex(j)
        if i >= 1:
            wait(f"v{i-1}"); pv_a(i - 1)
        for j in range(8, 12): ex(j)
        if i >= 1:
            pv_b(i - 1)
        vread(i)
        for j in range(12, 16): ex(j)
        a("s_nop 0")
        a(f"v_cvt_pk_bf16_f32 v{pb+7}, v{s+14}, v{s+15}")
    wait(f"v{NT-1}")
    a("s_nop 0")
    pv_a(NT - 1); pv_b(NT - 1)
    stamp(a, 3)
    a(f"""s_and_b32 s37, s34, 3
    s_lshl_b32 s37, s37, 12
    s_add_u32 s37, s37, {COMB}
    v_add_u32 v6, s37, v1
    s_nop 12
    s_cmp_eq_u32 s36, 0
    s_cbranch_scc1 Lk2_e1""")
    for r in range(4):
        a(f"ds_write_b128 v6, {vr(O+4*r,4)} offset:{r*1024}")
    a("s_waitcnt lgkmcnt(0)")
    a.label("Lk2_e1")
    a("""s_barrier
    s_cmp_eq_u32 s36, 0
    s_cbranch_scc0 Lk2_local""")
    for r in range(4):
        a(f"ds_read_b128 {vr(T+4*r,4)}, v6 offset:{r*1024}")
    a(f"""s_add_u32 s46, s35, 64
    s_lshl_b32 s46, s46, 4
    s_add_u32 s46, s46, s32
    s_lshl_b32 s46, s46, 11
    s_add_u32 s46, s46, {O_OFF}
    s_waitcnt lgkmcnt(0)""")
    for r in range(16):
        a(f"v_add_f32 v{O+r}, v{O+r}, v{T+r}")
    finalize(O, "s46", check=True)
    a(f"""s_cmp_lg_u64 s[60:61], 0
    s_cselect_b32 s62, 1, 0
    v_mov_b32 v7, s62
    s_lshl_b32 s37, s34, 2
    s_add_u32 s37, s37, {FLAG}
    v_mov_b32 v6, s37
    ds_write_b32 v6, v7
    s_waitcnt lgkmcnt(0)
    s_branch Lk2_e2""")
    a.label("Lk2_local")
    OA = O; P2 = PB[1]
    a(f"""s_cmp_lg_u32 s70, 0
    s_cbranch_scc1 Lk2_e2
    v_and_b32 v3, 31, v2
    v_lshrrev_b32 v4, 5, v2
    v_lshlrev_b32 v4, 2, v4
    v_sub_u32 v8, v3, v4               ; u
    s_cmp_eq_u32 s35, 0
    s_cselect_b32 s46, 1056, 32
    v_add_u32 v9, s46, v8              ; u_prev
    v_mov_b32 v10, 0xff800000          ; -inf
    v_mfma_f32_32x32x16_bf16 {vr(S0,16)}, {vr(LK0,4)}, {vr(LQ,4)}, 0
    v_mfma_f32_32x32x16_bf16 {vr(S0,16)}, {vr(LK0+4,4)}, {vr(LQ+4,4)}, {vr(S0,16)}
    v_mfma_f32_32x32x16_bf16 {vr(S1,16)}, {vr(LK1,4)}, {vr(LQ,4)}, 0
    v_mfma_f32_32x32x16_bf16 {vr(S1,16)}, {vr(LK1+4,4)}, {vr(LQ+4,4)}, {vr(S1,16)}""")
    items = [(S0 + j, 9, 8 * (j >> 2) + (j & 3)) for j in range(8, 16)] + [(S1 + j, 8, 8 * (j >> 2) + (j & 3)) for j in range(16)]
    first = True
    for b in range(0, 24, 8):
        grp = items[b:b + 8]
        for n, (reg, ub, cj) in enumerate(grp):
            a(f"v_subrev_u32 v{T+n}, {cj}, v{ub}")
            a(f"v_and_b32 v{T+n}, {(~14) & 0xffffffff}, v{T+n}")
        for n, (reg, ub, cj) in enumerate(grp):
            a(f"v_cmp_eq_u32 s[{52+2*n}:{53+2*n}], 0, v{T+n}")
        a("s_nop 1")
        for n, (reg, ub, cj) in enumerate(grp):
            a(f"v_cndmask_b32 v{reg}, v10, v{reg}, s[{52+2*n}:{53+2*n}]")
    regs = [it[0] for it in items]
    a(f"v_max3_f32 v3, v{regs[0]}, v{regs[1]}, v{regs[2]}")
    for n in range(3, 23, 2):
        a(f"v_max3_f32 v3, v3, v{regs[n]}, v{regs[n+1]}")
    a(f"""v_max_f32 v3, v3, v{regs[23]}
    v_mov_b32 v4, v3
    s_nop 1
    v_permlane32_swap_b32 v3, v4
    v_max_f32 v3, v3, v4""")
    for r in regs:
        a(f"v_sub_f32 v{r}, v{r}, v3")
    for r in regs:
        a(f"v_exp_f32 v{r}, v{r}")
    a("s_nop 0")
    for p in range(4):
        a(f"v_cvt_pk_bf16_f32 v{P2+p}, v{S0+8+2*p}, v{S0+9+2*p}")
    for p in range(8):
        a(f"v_cvt_pk_bf16_f32 v{P+p}, v{S1+2*p}, v{S1+2*p+1}")
    a(f"""s_nop 1
    v_mfma_f32_32x32x16_bf16 {vr(OA,16)}, {vr(LV0,4)}, {vr(P2,4)}, 0
    v_mfma_f32_32x32x16_bf16 {vr(OA,16)}, {vr(LV1,4)}, {vr(P,4)}, {vr(OA,16)}
    v_mfma_f32_32x32x16_bf16 {vr(OA,16)}, {vr(LV1+4,4)}, {vr(P+4,4)}, {vr(OA,16)}
    s_lshl_b32 s46, s35, 4
    s_add_u32 s46, s46, s32
    s_lshl_b32 s46, s46, 11
    s_add_u32 s46, s46, {O_OFF}
    s_nop 12""")
    finalize(OA, "s46")
    a.label("Lk2_e2")
    if STAMP: a("s_waitcnt vmcnt(0)")
    stamp(a, 4)
    stamp_flush(a, 5, 34)
    a(f"""s_barrier
    s_cmp_lg_u32 s70, 0
    s_cbranch_scc1 Lk2_end
    v_mov_b32 v6, {FLAG}
    ds_read_b128 v[8:11], v6
    s_waitcnt lgkmcnt(0)
    v_or3_b32 v8, v8, v9, v10
    v_or_b32 v8, v8, v11
    s_nop 0
    v_readfirstlane_b32 s62, v8
    s_nop 3
    s_cmp_eq_u32 s62, 0
    s_cbranch_scc1 Lk2_end""")
    a(f"""s_mov_b32 s70, 1
    v_mov_b32 v12, 0xff800000
    s_mov_b32 s63, 0""")
    a.label("Lk2_fb")
    a(f"""s_barrier
    s_lshl_b32 s43, s63, 13
    s_add_u32 s43, s43, s40
    s_mov_b32 m0, s41
    s_nop 0
    buffer_load_dwordx4 v1, s[16:19], s43 offen lds
    s_waitcnt vmcnt(0)
    s_barrier""")
    for u in range(2):
        a(f"""ds_read_b128 {vr(KF,4)}, v{VBK} offset:{u*2048}
        ds_read_b128 {vr(KF+4,4)}, v{VBK} offset:{u*2048+1024}
        s_waitcnt lgkmcnt(0)
        v_mfma_f32_32x32x16_bf16 {vr(S0,16)}, {vr(KF,4)}, {vr(QF,4)}, 0
        v_mfma_f32_32x32x16_bf16 {vr(S0,16)}, {vr(KF+4,4)}, {vr(QF+4,4)}, {vr(S0,16)}
        s_nop 15""")
        for n in range(0, 16, 2):
            a(f"v_max3_f32 v12, v12, v{S0+n}, v{S0+n+1}")
    a(f"""s_add_u32 s63, s63, 1
    s_cmp_lt_u32 s63, 16
    s_cbranch_scc1 Lk2_fb
    v_mov_b32 v4, v12
    s_nop 1
    v_permlane32_swap_b32 v12, v4
    v_max_f32 v3, v12, v4
    s_lshl_b32 s37, s34, 8
    s_add_u32 s37, s37, {EXCH}
    v_lshlrev_b32 v5, 2, v2
    v_add_u32 v6, s37, v5
    ds_write_b32 v6, v3
    s_xor_b32 s37, s34, 4
    s_lshl_b32 s37, s37, 8
    s_add_u32 s37, s37, {EXCH}
    v_add_u32 v6, s37, v5
    s_waitcnt lgkmcnt(0)
    s_barrier
    ds_read_b32 v4, v6
    s_waitcnt lgkmcnt(0)
    v_max_f32 v3, v3, v4""")
    for r in range(16):
        a(f"v_mov_b32 v{O+r}, 0")
    for c in range(3): dma(c)
    a("""s_waitcnt vmcnt(4)
    s_barrier
    s_branch Lk2_setci""")
    a.label("Lk2_end")
    a("s_endpgm")
    return a.text(), 256 if STAMP else 176, EXCH + 2048
```

```python
from asmlib import *
import math, struct
from gen_common import *

def gen_k3():
    a = Asm()
    R = 452 * 128
    EX = 2 * R
    OF = 16
    ACC = 144
    WF = 176
    NB = 4
    T = 208
    a("""s_cmp_ge_u32 s2, 224
    s_cbranch_scc1 Lk3_end
    s_load_dwordx2 s[4:5], s[0:1], 16""")
    stamp(a, 0)
    a("""s_load_dwordx2 s[6:7], s[0:1], 40
    s_load_dwordx2 s[8:9], s[0:1], 56
    s_load_dwordx2 s[12:13], s[0:1], 72
    s_mov_b32 s3, 0x24924925
    s_lshr_b32 s30, s2, 3              ; j
    s_mul_hi_u32 s32, s30, s3          ; j/7
    s_mul_i32 s33, s32, 7
    s_sub_u32 s33, s30, s33            ; fb
    s_and_b32 s30, s2, 7
    s_lshl_b32 s30, s30, 2
    s_add_u32 s32, s32, s30
    v_lshrrev_b32 v3, 6, v0
    v_and_b32 v2, 63, v0
    v_readfirstlane_b32 s34, v3        ; w
    v_lshlrev_b32 v1, 4, v2
    s_waitcnt lgkmcnt(0)
    s_and_b32 s35, s34, 1
    s_lshr_b32 s36, s34, 1             ; type
    s_lshl_b32 s37, s32, 1
    s_add_u32 s37, s37, s35
    s_cmp_eq_u32 s36, 0
    s_cselect_b32 s4, s4, s6
    s_cselect_b32 s5, s5, s7""")
    srd(a, 16, 4, 448 * 896)
    srd(a, 20, 12, WS_USED)
    srd(a, 24, 8, 2048 * 896)
    a(f"""v_lshrrev_b32 v3, 3, v2
    v_mul_u32_u24 v4, 896, v3
    v_lshrrev_b32 v3, 2, v2
    v_and_b32 v3, 4, v3                ; ((l>>4)&1)<<2
    v_and_b32 v5, 7, v2
    v_xor_b32 v3, v3, v5
    v_lshlrev_b32 v3, 4, v3
    v_add_u32 v4, v4, v3
    s_mul_i32 s40, s36, {R}
    s_mul_i32 s41, s35, {224*128}
    s_add_u32 s40, s40, s41
    s_mul_i32 s41, s35, {224*896}
    s_lshl_b32 s42, s33, 7
    s_add_u32 s41, s41, s42""")
    for i in range(28):
        a(f"""s_add_u32 m0, s40, {i*1024}
        s_add_u32 s42, s41, {i*8*896}
        buffer_load_dwordx4 v4, s[16:19], s42 offen lds""")
    a(f"""v_lshlrev_b32 v5, 3, v2
    s_mul_i32 s42, s36, {R}
    s_add_u32 s42, s42, {448*128}
    v_add_u32 v5, s42, v5
    v_mov_b32 v6, 0
    v_mov_b32 v7, 0
    ds_write_b64 v5, v[6:7]
    v_and_b32 v3, 31, v2
    v_lshlrev_b32 v5, 2, v3
    s_lshl_b32 s42, s37, 7
    s_add_u32 s42, s42, {G_OFF}
    buffer_load_dword v14, v5, s[20:23], s42 offen
    s_lshl_b32 s42, s37, 15
    s_lshl_b32 s43, s36, 21
    s_add_u32 s42, s42, s43
    s_add_u32 s42, s42, {O_OFF}""")
    for n in range(32):
        if n % 4 == 0 and n:
            a(f"s_add_u32 s42, s42, 4096")
        a(f"buffer_load_dwordx4 {vr(OF+4*n,4)}, v1, s[20:23], s42 offen offset:{(n%4)*1024}")
    a(f"""v_lshrrev_b32 v5, 5, v2
    v_lshlrev_b32 v6, 9, v5            ; hh*4*128
    v_and_b32 v5, 15, v2
    v_lshrrev_b32 v5, 2, v5            ; r
    v_lshlrev_b32 v7, 7, v5
    v_add_u32 v6, v6, v7
    v_lshrrev_b32 v5, 1, v5
    v_lshlrev_b32 v5, 6, v5            ; ((r>>1)&1)*64
    v_add_u32 v6, v6, v5
    v_lshrrev_b32 v5, 4, v2
    v_and_b32 v5, 1, v5
    v_lshlrev_b32 v5, 5, v5
    v_add_u32 v6, v6, v5
    v_and_b32 v5, 3, v2
    v_lshlrev_b32 v5, 3, v5
    v_add_u32 v6, v6, v5
    s_mul_i32 s42, s36, {R}
    v_add_u32 v6, s42, v6              ; ftl 0
    v_xor_b32 v7, 64, v6               ; ftl 1
    s_lshl_b32 s42, s37, 5
    v_add_u32 v3, s42, v3
    v_mul_u32_u24 v8, 896, v3
    v_lshrrev_b32 v5, 5, v2
    v_lshlrev_b32 v5, 3, v5
    v_add_u32 v8, v8, v5
    s_lshl_b32 s44, s33, 7
    s_lshl_b32 s42, s36, 6
    s_add_u32 s44, s44, s42
    s_lshl_b32 s42, s34, 11
    s_add_u32 s42, s42, {EX}
    v_add_u32 v9, s42, v1
    s_xor_b32 s42, s34, 2
    s_lshl_b32 s42, s42, 11
    s_add_u32 s42, s42, {EX}
    v_add_u32 v10, s42, v1
    s_waitcnt vmcnt(33) lgkmcnt(0)
    s_barrier""")
    stamp(a, 1)
    def rd(n):
        h, ks = n >> 1, n & 1
        b = WF + (n % NB) * 8
        off = (h * 28 + 16 * ks) * 128
        for f in range(2):
            a(f"ds_read_b64_tr_b16 {vr(b+4*f,2)}, v{6+f} offset:{off}")
            a(f"ds_read_b64_tr_b16 {vr(b+4*f+2,2)}, v{6+f} offset:{off+1024}")
    for i in range(NB - 1): rd(i)
    for n in range(32):
        if n + NB - 1 < 32: rd(n + NB - 1)
        rem = min(NB - 1, 31 - n)
        a(f"s_waitcnt vmcnt({31-n}) lgkmcnt({4*rem})")
        b = WF + (n % NB) * 8
        for f in range(2):
            c = "0" if n == 0 else vr(ACC + 16 * f, 16)
            a(f"v_mfma_f32_32x32x16_bf16 {vr(ACC+16*f,16)}, {vr(b+4*f,4)}, {vr(OF+4*n,4)}, {c}")
    stamp(a, 2)
    a(f"""v_sub_f32 v15, 1.0, v14
    v_cvt_pk_bf16_f32 v15, v15, v15
    v_lshlrev_b32 v15, 16, v15
    s_mov_b32 s45, 0xffff0000
    s_cmp_eq_u32 s36, 0
    s_cbranch_scc1 Lk3_t0
    v_mov_b32 v13, v14
    v_mov_b32 v14, v15
    v_mov_b32 v15, v13""")
    a.label("Lk3_t0")
    a("s_nop 10")
    for f in range(2):
        for p in range(8):
            a(f"v_cvt_pk_bf16_f32 v{T+8*f+p}, v{ACC+16*f+2*p}, v{ACC+16*f+2*p+1}")
    a("""s_cmp_eq_u32 s36, 0
    s_cbranch_scc1 Lk3_t1""")
    for p in range(8):
        a(f"v_swap_b32 v{T+p}, v{T+8+p}")
    a.label("Lk3_t1")
    a(f"""ds_write_b128 v9, {vr(T+8,4)}
    ds_write_b128 v9, {vr(T+12,4)} offset:1024
    s_waitcnt lgkmcnt(0)
    s_barrier
    ds_read_b128 {vr(T+8,4)}, v10
    ds_read_b128 {vr(T+12,4)}, v10 offset:1024""")
    A, B = ACC, ACC + 16
    for p in range(8):
        a(f"v_lshlrev_b32 v{A+2*p}, 16, v{T+p}")
        a(f"v_and_b32 v{A+2*p+1}, s45, v{T+p}")
    for r in range(16):
        a(f"v_mul_f32 v{A+r}, v14, v{A+r}")
    for p in range(8):
        a(f"v_cvt_pk_bf16_f32 v{T+p}, v{A+2*p}, v{A+2*p+1}")
    for p in range(8):
        a(f"v_lshlrev_b32 v{A+2*p}, 16, v{T+p}")
        a(f"v_and_b32 v{A+2*p+1}, s45, v{T+p}")
    a("s_waitcnt lgkmcnt(0)")
    for p in range(8):
        a(f"v_lshlrev_b32 v{B+2*p}, 16, v{T+8+p}")
        a(f"v_and_b32 v{B+2*p+1}, s45, v{T+8+p}")
    for r in range(16):
        a(f"v_mul_f32 v{B+r}, v15, v{B+r}")
    for p in range(8):
        a(f"v_cvt_pk_bf16_f32 v{T+8+p}, v{B+2*p}, v{B+2*p+1}")
    for p in range(8):
        a(f"v_lshlrev_b32 v{B+2*p}, 16, v{T+8+p}")
        a(f"v_and_b32 v{B+2*p+1}, s45, v{T+8+p}")
    for r in range(16):
        a(f"v_add_f32 v{A+r}, v{A+r}, v{B+r}")
    for p in range(8):
        a(f"v_cvt_pk_bf16_f32 v{T+p}, v{A+2*p}, v{A+2*p+1}")
    for g in range(4):
        a(f"buffer_store_dwordx2 {vr(T+2*g,2)}, v8, s[24:27], s44 offen offset:{g*16}")
    if STAMP: a("s_waitcnt vmcnt(0)")
    stamp(a, 3)
    stamp_flush(a, 4, 34)
    a.label("Lk3_end")
    a("s_endpgm")
    return a.text(), 256 if STAMP else 240, EX + 8192
```

```python
import sys
from asmlib import *
from gen_k1 import gen_k1
from gen_k2 import gen_k2
from gen_k3 import gen_k3

def build(kernels):
    hdr = open("gated_mix__sliding_local_dilated__mha_block__prompt.s.ref").read().split("; Override")[0]
    out = hdr
    for (name, grid, block, lds, _, _) in kernels:
        out += f"; @launch kernel={name} grid=({grid},1,1) block=({block},1,1) lds={lds}\n"
    out += '.amdgcn_target "amdgcn-amd-amdhsa--gfx950"\n.text\n'
    for (name, grid, block, lds, body, vg) in kernels:
        out += kernel_header(name) + body
    out += '.section .rodata,"a"\n.p2align 6\n'
    for (name, grid, block, lds, body, vg) in kernels:
        out += ".p2align 6\n" + kernel_desc(name, vg, accum=(256 if vg > 256 else None))
    return out

if __name__ == "__main__":
    k1, v1, lds1 = gen_k1()
    k2, v2, lds2 = gen_k2()
    k3, v3, lds3 = gen_k3()
    kernels = [("qkv_kernel", 256, 512, lds1, k1, v1), ("attn_kernel", 256, 512, lds2, k2, v2), ("proj_kernel", 224, 256, lds3, k3, v3)]
    dst = sys.argv[1] if len(sys.argv) > 1 else "gated_mix__sliding_local_dilated__mha_block__prompt.s"
    open(dst, "w").write(build(kernels))
```

```python
from asmlib import *
import math, struct, os
from gen_common import *

class Q:
    def __init__(self): self.q = []
    def push(self, tag): self.q.append(tag)
    def need(self, tag):
        last = -1
        for i, t in enumerate(self.q):
            if t == tag: last = i
        if last < 0: return None
        n = len(self.q) - 1 - last
        self.q = self.q[last + 1:]
        return n

def gen_k2():
    a = Asm()
    QF, KF, VF, S0, S1, O, CI = 16, 24, 32, 48, 64, 80, 96
    PB = [40, 112]
    VBK, VBV = 120, 121
    LQ, LK0, LK1, LV0, LV1 = 124, 132, 140, 148, 152
    T = 160
    CT = int(os.environ.get('CT', '4'))
    CB = CT * 4096
    NS = 5 if CT == 2 else 4
    NCH = 32 // CT
    PF = 3 if CT == 2 else 2
    VREG = NS * CB
    COMB = 2 * VREG; FLAG = COMB + 16384; EXCH = FLAG + 256
    S = [S0, S1]
    P = PB[0]
    a("""s_cmp_ge_u32 s2, 256
    s_cbranch_scc1 Lk2_end
    s_load_dwordx2 s[12:13], s[0:1], 72""")
    stamp(a, 0)
    a(f"""s_and_b32 s32, s2, 7
    s_lshr_b32 s33, s2, 3
    s_lshl_b32 s32, s32, 1
    s_and_b32 s37, s33, 1
    s_add_u32 s32, s32, s37            ; h
    s_lshr_b32 s33, s33, 1             ; qb
    v_lshrrev_b32 v3, 6, v0
    v_and_b32 v2, 63, v0
    v_readfirstlane_b32 s34, v3        ; w
    v_lshlrev_b32 v1, 4, v2            ; lane*16
    s_mov_b32 s70, 0
    s_and_b32 s37, s34, 3
    s_lshl_b32 s35, s33, 2
    s_add_u32 s35, s35, s37            ; qt
    s_lshr_b32 s36, s34, 2             ; ksp
    s_mul_i32 s37, s36, {CT*2048}
    v_add_u32 v{VBK}, s37, v1
    v_add_u32 v{VBV}, {VREG}, v{VBK}
    s_waitcnt lgkmcnt(0)""")
    srd(a, 16, 12, WS_USED)
    a(f"""s_add_u32 s37, s32, 16
    s_lshl_b32 s38, s37, 6
    s_add_u32 s38, s38, s35
    s_lshl_b32 s38, s38, 11
    buffer_load_dwordx4 {vr(QF,4)}, v1, s[16:19], s38 offen
    buffer_load_dwordx4 {vr(QF+4,4)}, v1, s[16:19], s38 offen offset:1024
    s_lshl_b32 s40, s37, 17            ; (16+h)*131072
    s_lshl_b32 s41, s34, 10            ; w*1024
    s_add_u32 s40, s40, s41
    s_add_u32 s42, s40, {V_OFF}        ; V base
    s_add_u32 s40, s40, {K_OFF}        ; K base
    s_mov_b32 s48, 0xffffffff
    s_mov_b32 s49, 0""")
    def local_loads():
        a(f"""s_cmp_eq_u32 s36, 1
        s_cbranch_scc0 Lk2_noll
        s_lshl_b32 s38, s32, 6
        s_add_u32 s39, s38, s35            ; h*64+qt
        s_sub_u32 s45, s35, 1
        s_max_i32 s45, s45, 0
        s_add_u32 s45, s38, s45            ; h*64+prev
        s_lshl_b32 s39, s39, 11
        s_lshl_b32 s45, s45, 11
        buffer_load_dwordx4 {vr(LQ,4)}, v1, s[16:19], s39 offen
        buffer_load_dwordx4 {vr(LQ+4,4)}, v1, s[16:19], s39 offen offset:1024
        s_add_u32 s46, s45, {K_OFF}
        buffer_load_dwordx4 {vr(LK0,4)}, v1, s[16:19], s46 offen
        buffer_load_dwordx4 {vr(LK0+4,4)}, v1, s[16:19], s46 offen offset:1024
        s_add_u32 s46, s39, {K_OFF}
        buffer_load_dwordx4 {vr(LK1,4)}, v1, s[16:19], s46 offen
        buffer_load_dwordx4 {vr(LK1+4,4)}, v1, s[16:19], s46 offen offset:1024
        s_add_u32 s46, s45, {V_OFF}
        buffer_load_dwordx4 {vr(LV0,4)}, v1, s[16:19], s46 offen offset:1024
        s_add_u32 s46, s39, {V_OFF}
        buffer_load_dwordx4 {vr(LV1,4)}, v1, s[16:19], s46 offen
        buffer_load_dwordx4 {vr(LV1+4,4)}, v1, s[16:19], s46 offen offset:1024""")
        a.label("Lk2_noll")
    def dma(c):
        slot = c % NS
        for u in range(CT // 2):
            a(f"""s_add_u32 s43, s40, {c*CB + u*8192}
            s_add_u32 m0, s41, {slot*CB + u*8192}
            s_add_u32 s44, s42, {c*CB + u*8192}
            buffer_load_dwordx4 v1, s[16:19], s43 offen lds
            s_add_u32 m0, s41, {VREG+slot*CB + u*8192}
            s_nop 0
            buffer_load_dwordx4 v1, s[16:19], s44 offen lds""")
    for c in range(PF): dma(c)

    def finalize(Oreg, soff, check=False):
        a(f"""v_mov_b32 v3, v{Oreg+12}
        v_mov_b32 v4, v{Oreg+12}
        s_nop 1
        v_permlane32_swap_b32 v3, v4
        v_rcp_f32 v5, v4""")
        if check:
            a(f"""v_mov_b32 v6, 0.5
            v_mov_b32 v7, {f32bits(2.0**40)}
            v_cmp_nge_f32 vcc, v4, v6
            v_cmp_nle_f32 s[60:61], v4, v7
            s_or_b64 s[60:61], s[60:61], vcc""")
        else:
            a("s_nop 0")
        for r in range(16):
            a(f"v_mul_f32 v{Oreg+r}, v5, v{Oreg+r}")
        for p in range(8):
            a(f"v_cvt_pk_bf16_f32 v{P+p}, v{Oreg+2*p}, v{Oreg+2*p+1}")
        a(f"""v_cndmask_b32 v{P+6}, 0, v{P+6}, s[48:49]
        v_cndmask_b32 v{P+7}, 0, v{P+7}, s[48:49]
        buffer_store_dwordx4 {vr(P,4)}, v1, s[16:19], {soff} offen{SF}
        buffer_store_dwordx4 {vr(P+4,4)}, v1, s[16:19], {soff} offen offset:1024{SF}""")

    a(f"""s_waitcnt vmcnt({(PF-1)*CT})
    s_barrier""")
    stamp(a, 1)
    a(f"""ds_read_b128 {vr(KF,4)}, v1
    ds_read_b128 {vr(KF+4,4)}, v1 offset:1024
    s_waitcnt lgkmcnt(0)
    v_mfma_f32_32x32x16_bf16 {vr(S0,16)}, {vr(KF,4)}, {vr(QF,4)}, 0
    v_mfma_f32_32x32x16_bf16 {vr(S0,16)}, {vr(KF+4,4)}, {vr(QF+4,4)}, {vr(S0,16)}""")
    for r in range(16):
        a(f"v_mov_b32 v{O+r}, 0")
    a(f"v_max3_f32 v3, v{S0}, v{S0+1}, v{S0+2}")
    for n in range(3, 15, 2):
        a(f"v_max3_f32 v3, v3, v{S0+n}, v{S0+n+1}")
    a(f"""v_max_f32 v3, v3, v{S0+15}
    v_mov_b32 v4, v3
    s_nop 1
    v_permlane32_swap_b32 v3, v4
    v_max_f32 v3, v3, v4""")
    a.label("Lk2_setci")
    stamp(a, 2)
    for r in range(16):
        a(f"v_sub_f32 v{CI+r}, 0, v3")
    lq = Q(); vq = Q()
    for c in range(1, PF):
        for _ in range(CT): vq.push(f"c{c}")
    def off(i):
        return ((i // CT) % NS) * CB + (i % CT) * 2048
    def kread(i):
        a(f"ds_read_b128 {vr(KF,4)}, v{VBK} offset:{off(i)}")
        a(f"ds_read_b128 {vr(KF+4,4)}, v{VBK} offset:{off(i)+1024}")
        lq.push(f"k{i}"); lq.push(f"k{i}")
    def vread(i):
        a(f"ds_read_b128 {vr(VF,4)}, v{VBV} offset:{off(i)}")
        a(f"ds_read_b128 {vr(VF+4,4)}, v{VBV} offset:{off(i)+1024}")
        lq.push(f"v{i}"); lq.push(f"v{i}")
    def wait(tag):
        n = lq.need(tag)
        if n is not None: a(f"s_waitcnt lgkmcnt({n})")
    def qk_a(i): a(f"v_mfma_f32_32x32x16_bf16 {vr(S[i%2],16)}, {vr(KF,4)}, {vr(QF,4)}, {vr(CI,16)}")
    def qk_b(i): a(f"v_mfma_f32_32x32x16_bf16 {vr(S[i%2],16)}, {vr(KF+4,4)}, {vr(QF+4,4)}, {vr(S[i%2],16)}")
    def pv_a(i): a(f"v_mfma_f32_32x32x16_bf16 {vr(O,16)}, {vr(VF,4)}, {vr(PB[i%2],4)}, {vr(O,16)}")
    def pv_b(i): a(f"v_mfma_f32_32x32x16_bf16 {vr(O,16)}, {vr(VF+4,4)}, {vr(PB[i%2]+4,4)}, {vr(O,16)}")
    kread(0)
    wait("k0")
    qk_a(0); qk_b(0)
    kread(1)
    a("s_nop 9")
    NT = 32
    for i in range(NT):
        c = i // CT
        if i % CT == 0:
            n = vq.need(f"c{c+1}")
            if n is not None and os.environ.get("NOBAR") != "1":
                a(f"s_waitcnt vmcnt({n})")
                a("s_barrier")
            if c + PF < NCH and os.environ.get('NODMA') != '1':
                dma(c + PF)
                for _ in range(CT): vq.push(f"c{c+PF}")
        if i == 8:
            a("s_cmp_lg_u32 s70, 0")
            a("s_cbranch_scc1 Lk2_noll")
            local_loads()
        s = S[i % 2]; pb = PB[i % 2]
        def ex(j):
            a(f"v_exp_f32 v{s+j}, v{s+j}")
            if j % 2 == 1 and j >= 3:
                p = (j - 3) // 2
                a(f"v_cvt_pk_bf16_f32 v{pb+p}, v{s+2*p}, v{s+2*p+1}")
        if i + 1 < NT:
            wait(f"k{i+1}"); qk_a(i + 1)
        for j in range(0, 4): ex(j)
        if i + 1 < NT:
            qk_b(i + 1)
            if i + 2 < NT: kread(i + 2)
        for j in range(4, 8): ex(j)
        if i >= 1:
            wait(f"v{i-1}"); pv_a(i - 1)
        for j in range(8, 12): ex(j)
        if i >= 1:
            pv_b(i - 1)
        vread(i)
        for j in range(12, 16): ex(j)
        a("s_nop 0")
        a(f"v_cvt_pk_bf16_f32 v{pb+7}, v{s+14}, v{s+15}")
    wait(f"v{NT-1}")
    a("s_nop 0")
    pv_a(NT - 1); pv_b(NT - 1)
    stamp(a, 3)
    a(f"""s_and_b32 s37, s34, 3
    s_lshl_b32 s37, s37, 12
    s_add_u32 s37, s37, {COMB}
    v_add_u32 v6, s37, v1
    s_nop 12
    s_cmp_eq_u32 s36, 0
    s_cbranch_scc1 Lk2_e1""")
    for r in range(4):
        a(f"ds_write_b128 v6, {vr(O+4*r,4)} offset:{r*1024}")
    a("s_waitcnt lgkmcnt(0)")
    a.label("Lk2_e1")
    a("""s_barrier
    s_cmp_eq_u32 s36, 0
    s_cbranch_scc0 Lk2_local""")
    for r in range(4):
        a(f"ds_read_b128 {vr(T+4*r,4)}, v6 offset:{r*1024}")
    a(f"""s_add_u32 s46, s35, 64
    s_lshl_b32 s46, s46, 4
    s_add_u32 s46, s46, s32
    s_lshl_b32 s46, s46, 11
    s_add_u32 s46, s46, {O_OFF}
    s_waitcnt lgkmcnt(0)""")
    for r in range(16):
        a(f"v_add_f32 v{O+r}, v{O+r}, v{T+r}")
    finalize(O, "s46", check=True)
    a(f"""s_cmp_lg_u64 s[60:61], 0
    s_cselect_b32 s62, 1, 0
    v_mov_b32 v7, s62
    s_lshl_b32 s37, s34, 2
    s_add_u32 s37, s37, {FLAG}
    v_mov_b32 v6, s37
    ds_write_b32 v6, v7
    s_waitcnt lgkmcnt(0)
    s_branch Lk2_e2""")
    a.label("Lk2_local")
    OA = O; P2 = PB[1]
    a(f"""s_cmp_lg_u32 s70, 0
    s_cbranch_scc1 Lk2_e2
    v_and_b32 v3, 31, v2
    v_lshrrev_b32 v4, 5, v2
    v_lshlrev_b32 v4, 2, v4
    v_sub_u32 v8, v3, v4               ; u
    s_cmp_eq_u32 s35, 0
    s_cselect_b32 s46, 1056, 32
    v_add_u32 v9, s46, v8              ; u_prev
    v_mov_b32 v10, 0xff800000          ; -inf
    v_mfma_f32_32x32x16_bf16 {vr(S0,16)}, {vr(LK0,4)}, {vr(LQ,4)}, 0
    v_mfma_f32_32x32x16_bf16 {vr(S0,16)}, {vr(LK0+4,4)}, {vr(LQ+4,4)}, {vr(S0,16)}
    v_mfma_f32_32x32x16_bf16 {vr(S1,16)}, {vr(LK1,4)}, {vr(LQ,4)}, 0
    v_mfma_f32_32x32x16_bf16 {vr(S1,16)}, {vr(LK1+4,4)}, {vr(LQ+4,4)}, {vr(S1,16)}""")
    items = [(S0 + j, 9, 8 * (j >> 2) + (j & 3)) for j in range(8, 16)] + [(S1 + j, 8, 8 * (j >> 2) + (j & 3)) for j in range(16)]
    first = True
    for b in range(0, 24, 8):
        grp = items[b:b + 8]
        for n, (reg, ub, cj) in enumerate(grp):
            a(f"v_subrev_u32 v{T+n}, {cj}, v{ub}")
            a(f"v_and_b32 v{T+n}, {(~14) & 0xffffffff}, v{T+n}")
        for n, (reg, ub, cj) in enumerate(grp):
            a(f"v_cmp_eq_u32 s[{52+2*n}:{53+2*n}], 0, v{T+n}")
        a("s_nop 1")
        for n, (reg, ub, cj) in enumerate(grp):
            a(f"v_cndmask_b32 v{reg}, v10, v{reg}, s[{52+2*n}:{53+2*n}]")
    regs = [it[0] for it in items]
    a(f"v_max3_f32 v3, v{regs[0]}, v{regs[1]}, v{regs[2]}")
    for n in range(3, 23, 2):
        a(f"v_max3_f32 v3, v3, v{regs[n]}, v{regs[n+1]}")
    a(f"""v_max_f32 v3, v3, v{regs[23]}
    v_mov_b32 v4, v3
    s_nop 1
    v_permlane32_swap_b32 v3, v4
    v_max_f32 v3, v3, v4""")
    for r in regs:
        a(f"v_sub_f32 v{r}, v{r}, v3")
    for r in regs:
        a(f"v_exp_f32 v{r}, v{r}")
    a("s_nop 0")
    for p in range(4):
        a(f"v_cvt_pk_bf16_f32 v{P2+p}, v{S0+8+2*p}, v{S0+9+2*p}")
    for p in range(8):
        a(f"v_cvt_pk_bf16_f32 v{P+p}, v{S1+2*p}, v{S1+2*p+1}")
    a(f"""s_nop 1
    v_mfma_f32_32x32x16_bf16 {vr(OA,16)}, {vr(LV0,4)}, {vr(P2,4)}, 0
    v_mfma_f32_32x32x16_bf16 {vr(OA,16)}, {vr(LV1,4)}, {vr(P,4)}, {vr(OA,16)}
    v_mfma_f32_32x32x16_bf16 {vr(OA,16)}, {vr(LV1+4,4)}, {vr(P+4,4)}, {vr(OA,16)}
    s_lshl_b32 s46, s35, 4
    s_add_u32 s46, s46, s32
    s_lshl_b32 s46, s46, 11
    s_add_u32 s46, s46, {O_OFF}
    s_nop 12""")
    finalize(OA, "s46")
    a.label("Lk2_e2")
    if STAMP: a("s_waitcnt vmcnt(0)")
    stamp(a, 4)
    stamp_flush(a, 5, 34)
    a(f"""s_barrier
    s_cmp_lg_u32 s70, 0
    s_cbranch_scc1 Lk2_end
    v_mov_b32 v6, {FLAG}
    ds_read_b128 v[8:11], v6
    s_waitcnt lgkmcnt(0)
    v_or3_b32 v8, v8, v9, v10
    v_or_b32 v8, v8, v11
    s_nop 0
    v_readfirstlane_b32 s62, v8
    s_nop 3
    s_cmp_eq_u32 s62, 0
    s_cbranch_scc1 Lk2_end""")
    a(f"""s_mov_b32 s70, 1
    v_mov_b32 v12, 0xff800000
    s_lshl_b32 s37, s36, 12
    v_add_u32 v13, s37, v1
    s_mov_b32 s63, 0""")
    a.label("Lk2_fb")
    a(f"""s_barrier
    s_lshl_b32 s43, s63, 13
    s_add_u32 s43, s43, s40
    s_mov_b32 m0, s41
    s_nop 0
    buffer_load_dwordx4 v1, s[16:19], s43 offen lds
    s_waitcnt vmcnt(0)
    s_barrier""")
    for u in range(2):
        a(f"""ds_read_b128 {vr(KF,4)}, v13 offset:{u*2048}
        ds_read_b128 {vr(KF+4,4)}, v13 offset:{u*2048+1024}
        s_waitcnt lgkmcnt(0)
        v_mfma_f32_32x32x16_bf16 {vr(S0,16)}, {vr(KF,4)}, {vr(QF,4)}, 0
        v_mfma_f32_32x32x16_bf16 {vr(S0,16)}, {vr(KF+4,4)}, {vr(QF+4,4)}, {vr(S0,16)}
        s_nop 15""")
        for n in range(0, 16, 2):
            a(f"v_max3_f32 v12, v12, v{S0+n}, v{S0+n+1}")
    a(f"""s_add_u32 s63, s63, 1
    s_cmp_lt_u32 s63, 16
    s_cbranch_scc1 Lk2_fb
    v_mov_b32 v4, v12
    s_nop 1
    v_permlane32_swap_b32 v12, v4
    v_max_f32 v3, v12, v4
    s_lshl_b32 s37, s34, 8
    s_add_u32 s37, s37, {EXCH}
    v_lshlrev_b32 v5, 2, v2
    v_add_u32 v6, s37, v5
    ds_write_b32 v6, v3
    s_xor_b32 s37, s34, 4
    s_lshl_b32 s37, s37, 8
    s_add_u32 s37, s37, {EXCH}
    v_add_u32 v6, s37, v5
    s_waitcnt lgkmcnt(0)
    s_barrier
    ds_read_b32 v4, v6
    s_waitcnt lgkmcnt(0)
    v_max_f32 v3, v3, v4""")
    for r in range(16):
        a(f"v_mov_b32 v{O+r}, 0")
    for c in range(PF): dma(c)
    a(f"""s_waitcnt vmcnt({(PF-1)*CT})
    s_barrier
    s_branch Lk2_setci""")
    a.label("Lk2_end")
    a("s_endpgm")
    return a.text(), 256 if STAMP else 176, EXCH + 2048
```

```python
from asmlib import *
import math, struct
from gen_common import *
from gen_k2 import Q

def gen_k3():
    a = Asm()
    R = 452 * 128
    EX = 2 * R
    OF = 16
    ACC = 144
    WF = 176
    NB = 4
    T = 208
    a("""s_cmp_ge_u32 s2, 224
    s_cbranch_scc1 Lk3_end
    s_load_dwordx2 s[4:5], s[0:1], 16""")
    stamp(a, 0)
    tl_start(a)
    wgt_start(a)
    a("""s_load_dwordx2 s[6:7], s[0:1], 40
    s_load_dwordx2 s[8:9], s[0:1], 56
    s_load_dwordx2 s[12:13], s[0:1], 72
    s_mov_b32 s3, 0x24924925
    s_lshr_b32 s30, s2, 3              ; j
    s_mul_hi_u32 s32, s30, s3          ; j/7
    s_mul_i32 s33, s32, 7
    s_sub_u32 s33, s30, s33            ; fb
    s_and_b32 s30, s2, 7
    s_lshl_b32 s30, s30, 2
    s_add_u32 s32, s32, s30
    v_lshrrev_b32 v3, 6, v0
    v_and_b32 v2, 63, v0
    v_readfirstlane_b32 s34, v3        ; w
    v_lshlrev_b32 v1, 4, v2
    s_waitcnt lgkmcnt(0)
    s_and_b32 s35, s34, 1
    s_lshr_b32 s36, s34, 1             ; type
    s_lshl_b32 s37, s32, 1
    s_add_u32 s37, s37, s35
    s_cmp_eq_u32 s36, 0
    s_cselect_b32 s4, s4, s6
    s_cselect_b32 s5, s5, s7""")
    srd(a, 16, 4, 448 * 896)
    srd(a, 20, 12, WS_USED)
    srd(a, 24, 8, 2048 * 896)
    a(f"""v_lshrrev_b32 v3, 3, v2
    v_mul_u32_u24 v4, 896, v3
    v_lshrrev_b32 v3, 2, v2
    v_and_b32 v3, 4, v3                ; ((l>>4)&1)<<2
    v_and_b32 v5, 7, v2
    v_xor_b32 v3, v3, v5
    v_lshlrev_b32 v3, 4, v3
    v_add_u32 v4, v4, v3
    s_mul_i32 s40, s36, {R}
    s_lshl_b32 s41, s35, 10
    s_add_u32 s40, s40, s41
    s_mul_i32 s41, s35, {8*896}
    s_lshl_b32 s42, s33, 7
    s_add_u32 s41, s41, s42
    v_lshlrev_b32 v5, 3, v2
    s_mul_i32 s42, s36, {R}
    s_add_u32 s42, s42, {448*128}
    v_add_u32 v5, s42, v5
    v_mov_b32 v6, 0
    v_mov_b32 v7, 0
    ds_write_b64 v5, v[6:7]
    v_and_b32 v3, 31, v2
    v_lshlrev_b32 v5, 2, v3
    s_lshl_b32 s42, s37, 7
    s_add_u32 s42, s42, {G_OFF}
    buffer_load_dword v14, v5, s[20:23], s42 offen
    s_lshl_b32 s46, s37, 15
    s_lshl_b32 s43, s36, 21
    s_add_u32 s46, s46, s43
    s_add_u32 s46, s46, {O_OFF}""")
    vq = Q()
    JB = [0, 8, 15, 22, 28]
    def issue(p):
        for j in range(JB[p], JB[p + 1]):
            a(f"""s_add_u32 m0, s40, {j*2048}
            s_add_u32 s42, s41, {j*16*896}
            buffer_load_dwordx4 v4, s[16:19], s42 offen lds""")
            vq.push(f"d{p}")
        for n in range(8 * p, 8 * p + 8):
            if n % 4 == 0 and n:
                a(f"s_add_u32 s46, s46, 4096")
            a(f"buffer_load_dwordx4 {vr(OF+4*n,4)}, v1, s[20:23], s46 offen offset:{(n%4)*1024}")
            vq.push(f"o{n}")
    issue(0); issue(1)
    a(f"""v_lshrrev_b32 v5, 5, v2
    v_lshlrev_b32 v6, 9, v5            ; hh*4*128
    v_and_b32 v5, 15, v2
    v_lshrrev_b32 v5, 2, v5            ; r
    v_lshlrev_b32 v7, 7, v5
    v_add_u32 v6, v6, v7
    v_lshrrev_b32 v5, 1, v5
    v_lshlrev_b32 v5, 6, v5            ; ((r>>1)&1)*64
    v_add_u32 v6, v6, v5
    v_lshrrev_b32 v5, 4, v2
    v_and_b32 v5, 1, v5
    v_lshlrev_b32 v5, 5, v5
    v_add_u32 v6, v6, v5
    v_and_b32 v5, 3, v2
    v_lshlrev_b32 v5, 3, v5
    v_add_u32 v6, v6, v5
    s_mul_i32 s42, s36, {R}
    v_add_u32 v6, s42, v6              ; ftl 0
    v_xor_b32 v7, 64, v6               ; ftl 1
    s_lshl_b32 s42, s37, 5
    v_add_u32 v3, s42, v3
    v_mul_u32_u24 v8, 896, v3
    v_lshrrev_b32 v5, 5, v2
    v_lshlrev_b32 v5, 3, v5
    v_add_u32 v8, v8, v5
    s_lshl_b32 s44, s33, 7
    s_lshl_b32 s42, s36, 6
    s_add_u32 s44, s44, s42
    s_lshl_b32 s42, s34, 11
    s_add_u32 s42, s42, {EX}
    v_add_u32 v9, s42, v1
    s_xor_b32 s42, s34, 2
    s_lshl_b32 s42, s42, 11
    s_add_u32 s42, s42, {EX}
    v_add_u32 v10, s42, v1
    s_waitcnt lgkmcnt(0)""")
    def rd(n):
        h, ks = n >> 1, n & 1
        b = WF + (n % NB) * 8
        off = (h * 28 + 16 * ks) * 128
        for f in range(2):
            a(f"ds_read_b64_tr_b16 {vr(b+4*f,2)}, v{6+f} offset:{off}")
            a(f"ds_read_b64_tr_b16 {vr(b+4*f+2,2)}, v{6+f} offset:{off+1024}")
    for n in range(32):
        if n % 8 == 0:
            a(f"s_waitcnt vmcnt({vq.need(f'd{n//8}')})")
            a("s_barrier")
            if n == 0: stamp(a, 1)
            for i in range(NB - 1): rd(n + i)
            if n // 8 + 2 < 4: issue(n // 8 + 2)
        lim = (n // 8) * 8 + 7
        if n + NB - 1 <= lim: rd(n + NB - 1)
        rem = min(NB - 1, lim - n)
        a(f"s_waitcnt vmcnt({vq.need(f'o{n}')}) lgkmcnt({4*rem})")
        b = WF + (n % NB) * 8
        for f in range(2):
            c = "0" if n == 0 else vr(ACC + 16 * f, 16)
            a(f"v_mfma_f32_32x32x16_bf16 {vr(ACC+16*f,16)}, {vr(b+4*f,4)}, {vr(OF+4*n,4)}, {c}")
    stamp(a, 2)
    a(f"""v_sub_f32 v15, 1.0, v14
    v_cvt_pk_bf16_f32 v15, v15, v15
    v_lshlrev_b32 v15, 16, v15
    s_mov_b32 s45, 0xffff0000
    s_cmp_eq_u32 s36, 0
    s_cbranch_scc1 Lk3_t0
    v_mov_b32 v13, v14
    v_mov_b32 v14, v15
    v_mov_b32 v15, v13""")
    a.label("Lk3_t0")
    a("s_nop 10")
    for f in range(2):
        for p in range(8):
            a(f"v_cvt_pk_bf16_f32 v{T+8*f+p}, v{ACC+16*f+2*p}, v{ACC+16*f+2*p+1}")
    a("""s_cmp_eq_u32 s36, 0
    s_cbranch_scc1 Lk3_t1""")
    for p in range(8):
        a(f"v_swap_b32 v{T+p}, v{T+8+p}")
    a.label("Lk3_t1")
    a(f"""ds_write_b128 v9, {vr(T+8,4)}
    ds_write_b128 v9, {vr(T+12,4)} offset:1024
    s_waitcnt lgkmcnt(0)
    s_barrier
    ds_read_b128 {vr(T+8,4)}, v10
    ds_read_b128 {vr(T+12,4)}, v10 offset:1024""")
    A, B = ACC, ACC + 16
    for p in range(8):
        a(f"v_lshlrev_b32 v{A+2*p}, 16, v{T+p}")
        a(f"v_and_b32 v{A+2*p+1}, s45, v{T+p}")
    for r in range(16):
        a(f"v_mul_f32 v{A+r}, v14, v{A+r}")
    for p in range(8):
        a(f"v_cvt_pk_bf16_f32 v{T+p}, v{A+2*p}, v{A+2*p+1}")
    for p in range(8):
        a(f"v_lshlrev_b32 v{A+2*p}, 16, v{T+p}")
        a(f"v_and_b32 v{A+2*p+1}, s45, v{T+p}")
    a("s_waitcnt lgkmcnt(0)")
    for p in range(8):
        a(f"v_lshlrev_b32 v{B+2*p}, 16, v{T+8+p}")
        a(f"v_and_b32 v{B+2*p+1}, s45, v{T+8+p}")
    for r in range(16):
        a(f"v_mul_f32 v{B+r}, v15, v{B+r}")
    for p in range(8):
        a(f"v_cvt_pk_bf16_f32 v{T+8+p}, v{B+2*p}, v{B+2*p+1}")
    for p in range(8):
        a(f"v_lshlrev_b32 v{B+2*p}, 16, v{T+8+p}")
        a(f"v_and_b32 v{B+2*p+1}, s45, v{T+8+p}")
    for r in range(16):
        a(f"v_add_f32 v{A+r}, v{A+r}, v{B+r}")
    for p in range(8):
        a(f"v_cvt_pk_bf16_f32 v{T+p}, v{A+2*p}, v{A+2*p+1}")
    for g in range(4):
        a(f"buffer_store_dwordx2 {vr(T+2*g,2)}, v8, s[24:27], s44 offen offset:{g*16}{SF3}")
    if STAMP: a("s_waitcnt vmcnt(0)")
    stamp(a, 3)
    stamp_flush(a, 4, 34)
    tl_end(a, 2, 34)
    wgt_end(a, 2, 34, 0)
    a.label("Lk3_end")
    a("s_endpgm")
    return a.text(), 256 if STAMP else 240, EX + 8192
```

```python
from asmlib import *
import math, struct, os
from gen_common import *

def gen_k1():
    a = Asm()
    ACC = 16
    WF = 64
    XFR = 88
    PK = 96
    XA = 120
    GF = 128
    XS = 32768; WB = 98304; WS = 12288
    GA = WB + 3 * WS
    a("""s_cmp_ge_u32 s2, 256
    s_cbranch_scc1 Lk1_end
    s_load_dwordx2 s[4:5], s[0:1], 0""")
    stamp(a, 0)
    tl_start(a)
    a("""s_load_dwordx2 s[6:7], s[0:1], 8
    s_load_dwordx2 s[8:9], s[0:1], 32
    s_load_dwordx2 s[10:11], s[0:1], 48
    s_load_dwordx2 s[12:13], s[0:1], 72
    s_and_b32 s32, s2, 7
    s_lshr_b32 s33, s2, 3
    s_and_b32 s34, s32, 1
    s_lshr_b32 s35, s32, 1
    s_and_b32 s36, s33, 3
    s_lshl_b32 s34, s34, 2
    s_add_u32 s34, s34, s36
    s_lshr_b32 s36, s33, 2
    s_lshl_b32 s35, s35, 3
    s_add_u32 s35, s35, s36
    s_lshr_b32 s36, s35, 4
    s_and_b32 s37, s35, 15
    v_lshrrev_b32 v1, 6, v0
    v_and_b32 v2, 63, v0
    v_readfirstlane_b32 s38, v1
    s_waitcnt lgkmcnt(0)""")
    srd(a, 16, 4, 2048 * 896)
    a("""s_cmp_eq_u32 s36, 0
    s_cselect_b32 s6, s6, s8
    s_cselect_b32 s7, s7, s9""")
    srd(a, 20, 6, 448 * 2688)
    srd(a, 24, 12, WS_USED)
    srd(a, 28, 10, 896)
    a(f"""s_lshl_b32 s39, s34, 3
    s_add_u32 s39, s39, s38            ; stile
    s_mul_i32 s40, s39, {32*896}
    s_lshl_b32 s41, s38, 12            ; w*4096 (x LDS)
    s_mul_i32 s42, s37, 56             ; h*56
    s_mul_i32 s45, s38, {24*64}
    s_add_u32 s45, s45, {WB}
    v_lshrrev_b32 v3, 3, v2
    v_mul_u32_u24 v4, 896, v3
    v_and_b32 v3, 7, v2
    v_lshrrev_b32 v6, 4, v2
    v_xor_b32 v3, v3, v6
    v_lshlrev_b32 v6, 4, v3
    v_xor_b32 v7, 64, v6
    v_add_u32 v5, v4, v7
    v_add_u32 v4, v4, v6
    s_mul_i32 s43, s38, 24
    v_lshrrev_b32 v3, 2, v2
    v_add_u32 v3, s43, v3              ; r
    v_and_b32 v8, 3, v2
    v_lshlrev_b32 v8, 4, v8            ; c*16
    v_lshrrev_b32 v9, 6, v3            ; j
    v_and_b32 v10, 63, v3              ; k
    v_mul_u32_u24 v6, 2688, v10
    v_mul_u32_u24 v9, 896, v9
    v_add3_u32 v6, v6, v9, v8
    v_add_u32 v3, 16, v3
    v_lshrrev_b32 v9, 6, v3
    v_and_b32 v10, 63, v3
    v_mul_u32_u24 v7, 2688, v10
    v_mul_u32_u24 v9, 896, v9
    v_add3_u32 v7, v7, v9, v8
    s_cmp_eq_u32 s35, s38
    s_cselect_b32 s53, 1, 0
    s_mov_b32 s54, 0x10000000
    s_mov_b32 s55, 0x10000000
    v_lshrrev_b32 v3, 5, v2
    v_lshlrev_b32 v13, 4, v3
    v_add_u32 v13, {GA}, v13
    v_lshlrev_b32 v12, 4, v2
    s_cmp_eq_u32 s53, 1
    s_cbranch_scc0 Lk1_nog0
    s_mov_b32 m0, {GA}
    s_nop 0
    buffer_load_dwordx4 v12, s[28:31], 0 offen lds""")
    a.label("Lk1_nog0")
    def dma(kc):
        st = kc % 3
        for i in range(4):
            a(f"""s_add_u32 m0, s41, {st*XS + i*1024}
            s_add_u32 s43, s40, {i*8*896 + kc*128}
            buffer_load_dwordx4 v{4+(i&1)}, s[16:19], s43 offen lds""")
        a(f"""s_add_u32 m0, s45, {st*WS}
        s_add_u32 s43, s42, {kc*64*2688}
        buffer_load_dwordx4 v6, s[20:23], s43 offen lds
        s_add_u32 m0, s45, {st*WS+1024}
        s_mov_b32 exec_hi, 0
        buffer_load_dwordx4 v7, s[20:23], s43 offen lds
        s_mov_b32 exec_hi, -1""")
    dma(0); dma(1)
    a(f"""v_and_b32 v3, 31, v2
    v_lshrrev_b32 v8, 1, v3
    v_and_b32 v8, 7, v8                ; g
    v_lshrrev_b32 v9, 5, v2            ; hh
    v_xor_b32 v8, v8, v9
    v_lshlrev_b32 v8, 4, v8
    v_lshlrev_b32 v3, 7, v3
    v_add3_u32 v{XA}, v3, v8, s41
    v_xor_b32 v{XA+1}, 32, v{XA}
    v_xor_b32 v{XA+2}, 64, v{XA}
    v_xor_b32 v{XA+3}, 96, v{XA}
    v_add_u32 v{XA+4}, {2*XS}, v{XA}
    v_add_u32 v{XA+5}, {2*XS}, v{XA+1}
    v_add_u32 v{XA+6}, {2*XS}, v{XA+2}
    v_add_u32 v{XA+7}, {2*XS}, v{XA+3}
    v_lshrrev_b32 v3, 5, v2
    v_lshlrev_b32 v11, 9, v3            ; hh*8*64
    v_and_b32 v3, 15, v2
    v_lshrrev_b32 v3, 2, v3
    v_lshlrev_b32 v3, 6, v3            ; r*64
    v_add_u32 v11, v11, v3
    v_lshrrev_b32 v3, 4, v2
    v_and_b32 v3, 1, v3
    v_lshlrev_b32 v3, 5, v3            ; colhalf*32
    v_add_u32 v11, v11, v3
    v_and_b32 v3, 3, v2
    v_lshlrev_b32 v3, 3, v3
    v_add_u32 v11, v11, v3
    v_add_u32 v11, {WB}, v11
    v_lshlrev_b32 v12, 4, v2""")
    def rd(ks):
        kc, m = ks >> 2, ks & 3
        st = kc % 3
        b = WF + (ks % 2) * 12
        xa = XA + m + (4 if st == 2 else 0)
        xo = 0 if st == 2 else st * XS
        a(f"""s_cmp_eq_u32 s53, 1
        s_cbranch_scc0 Lk1_gr{ks}
        ds_read_b128 {vr(GF+4*(ks%2),4)}, v13 offset:{ks*32}""")
        a.label(f"Lk1_gr{ks}")
        a(f"ds_read_b128 {vr(XFR+4*(ks%2),4)}, v{xa} offset:{xo}")
        for j in range(3):
            off = st * WS + j * 4096 + m * 1024
            a(f"ds_read_b64_tr_b16 {vr(b+4*j,2)}, v11 offset:{off}")
            a(f"ds_read_b64_tr_b16 {vr(b+4*j+2,2)}, v11 offset:{off+256}")
    for kc in range(7):
        a(f"s_waitcnt vmcnt({6 if kc < 6 else 0})")
        a("s_barrier")
        if kc == 0: stamp(a, 1)
        if kc + 2 < 7: dma(kc + 2)
        rd(4 * kc)
        for m in range(4):
            ks = 4 * kc + m
            if m < 3:
                rd(ks + 1)
            a(f"s_waitcnt lgkmcnt({7 if m<3 else 0})")
            b = WF + (ks % 2) * 12
            x = vr(XFR + 4 * (ks % 2), 4)
            a(f"""s_cmp_eq_u32 s53, 1
            s_cbranch_scc0 Lk1_ng{ks}""")
            for q in range(4):
                a(f"v_cndmask_b32 v{b+q}, v{b+q}, v{GF+4*(ks%2)+q}, s[54:55]")
            a("s_nop 1")
            a.label(f"Lk1_ng{ks}")
            for j in range(3):
                c = "0" if ks == 0 else vr(ACC + 16 * j, 16)
                if j < 2:
                    a(f"v_mfma_f32_32x32x16_bf16 {vr(ACC+16*j,16)}, {vr(b+4*j,4)}, {x}, {c}")
                else:
                    a(f"v_mfma_f32_32x32x16_bf16 {vr(ACC+16*j,16)}, {x}, {vr(b+4*j,4)}, {c}")
    stamp(a, 2)
    a(f"""s_mov_b32 s48, 0xffffffff
    s_mov_b32 s49, 0
    s_mov_b32 s50, 0x0fffffff
    s_mov_b32 s51, 0x0fffffff          ; (l&31)<28 mask
    s_mov_b32 s52, {f32bits(CSCALE)}
    v_and_b32 v3, 31, v2
    v_mov_b32 v9, 0x3f803f80
    v_cmp_eq_u32 vcc, 28, v3
    s_nop 1
    v_cndmask_b32 v9, 0, v9, vcc
    s_lshl_b32 s43, s35, 6
    s_add_u32 s43, s43, s39
    s_lshl_b32 s43, s43, 11            ; (th*64+stile)*2048
    s_nop 7
    s_cmp_eq_u32 s53, 1
    s_cbranch_scc0 Lk1_nogate2""")
    a(f"""v_mov_b32 v10, v{ACC+12}
    v_cvt_pk_bf16_f32 v10, v10, v10
    v_lshlrev_b32 v10, 16, v10
    v_mul_f32 v10, {f32bits(-math.log2(math.e))}, v10
    v_exp_f32 v10, v10
    s_nop 0
    v_add_f32 v10, 1.0, v10
    v_rcp_f32 v10, v10
    s_nop 0
    v_cvt_pk_bf16_f32 v10, v10, v10
    v_lshlrev_b32 v10, 16, v10
    v_and_b32 v3, 31, v2
    v_lshlrev_b32 v3, 2, v3
    s_lshl_b32 s44, s39, 7
    s_add_u32 s44, s44, {G_OFF}
    s_mov_b32 exec_lo, 0
    buffer_store_dword v10, v3, s[24:27], s44 offen
    s_mov_b32 exec_lo, -1""")
    a.label("Lk1_nogate2")
    for j in range(3):
        A = ACC + 16 * j
        if j == 0:
            for r in range(16):
                a(f"v_mul_f32 v{A+r}, s52, v{A+r}")
        for p in range(8):
            a(f"v_cvt_pk_bf16_f32 v{PK+p}, v{A+2*p}, v{A+2*p+1}")
        if j < 2:
            a(f"v_cndmask_b32 v{PK+6}, 0, v{PK+6}, s[48:49]")
            a(f"v_cndmask_b32 v{PK+7}, 0, v{PK+7}, s[48:49]")
        else:
            for p in range(8):
                a(f"v_cndmask_b32 v{PK+p}, v9, v{PK+p}, s[50:51]")
        a(f"s_add_u32 s44, s43, {[Q_OFF,K_OFF,V_OFF][j]}")
        a(f"buffer_store_dwordx4 {vr(PK,4)}, v12, s[24:27], s44 offen{SF}")
        a(f"buffer_store_dwordx4 {vr(PK+4,4)}, v12, s[24:27], s44 offen offset:1024{SF}")
        PK += 8
    if STAMP:
        a("s_waitcnt vmcnt(0)")
    stamp(a, 3)
    stamp_flush(a, 4, 38)
    tl_end(a, 0, 38)
    a.label("Lk1_end")
    a("s_endpgm")
    return a.text(), 256 if STAMP else 136, GA + 1024
```

```python
from asmlib import *
import math, struct, os
from gen_common import *

class Q:
    def __init__(self): self.q = []
    def push(self, tag): self.q.append(tag)
    def need(self, tag):
        last = -1
        for i, t in enumerate(self.q):
            if t == tag: last = i
        if last < 0: return None
        n = len(self.q) - 1 - last
        self.q = self.q[last + 1:]
        return n

def gen_k2():
    a = Asm()
    QF, KF, VF, S0, S1, O, CI = 16, 24, 32, 48, 64, 80, 96
    PB = [40, 112]
    VBK, VBV = 120, 121
    LQ, LK0, LK1, LV0, LV1 = 124, 132, 140, 148, 152
    T = 160
    CT = int(os.environ.get('CT', '4'))
    CB = CT * 4096
    NS = 5 if CT == 2 else 4
    NCH = 32 // CT
    PF = 3
    SYNC = 0 if CT == 2 else CT - 2
    VREG = NS * CB
    COMB = 2 * VREG; FLAG = COMB + 16384; EXCH = FLAG + 256
    S = [S0, S1]
    P = PB[0]
    a("""s_cmp_ge_u32 s2, 256
    s_cbranch_scc1 Lk2_end
    s_load_dwordx2 s[12:13], s[0:1], 72
    s_load_dwordx2 s[4:5], s[0:1], 16
    s_load_dwordx2 s[6:7], s[0:1], 40""")
    stamp(a, 0)
    tl_start(a)
    a(f"""s_and_b32 s32, s2, 7
    s_lshr_b32 s33, s2, 3
    s_lshl_b32 s32, s32, 1
    s_and_b32 s37, s33, 1
    s_add_u32 s32, s32, s37            ; h
    s_lshr_b32 s33, s33, 1             ; qb
    v_lshrrev_b32 v3, 6, v0
    v_and_b32 v2, 63, v0
    v_readfirstlane_b32 s34, v3        ; w
    v_lshlrev_b32 v1, 4, v2            ; lane*16
    s_mov_b32 s70, 0
    s_and_b32 s37, s34, 3
    s_lshl_b32 s35, s33, 2
    s_add_u32 s35, s35, s37            ; qt
    s_lshr_b32 s36, s34, 2             ; ksp
    s_mul_i32 s37, s36, {CT*2048}
    v_add_u32 v{VBK}, s37, v1
    v_add_u32 v{VBV}, {VREG}, v{VBK}
    s_waitcnt lgkmcnt(0)""")
    srd(a, 16, 12, WS_USED)
    a("""s_lshl_b32 s64, s2, 3
    s_add_u32 s64, s64, s34
    s_cmp_lt_u32 s64, 392
    s_cselect_b32 s4, s4, s6
    s_cselect_b32 s5, s5, s7
    s_sub_u32 s65, s64, 392
    s_cselect_b32 s64, s64, s65
    s_lshl_b32 s64, s64, 10""")
    srd(a, 20, 4, 448 * 896)
    a(f"""s_add_u32 s37, s32, 16
    s_lshl_b32 s38, s37, 6
    s_add_u32 s38, s38, s35
    s_lshl_b32 s38, s38, 11
    buffer_load_dwordx4 {vr(QF,4)}, v1, s[16:19], s38 offen
    buffer_load_dwordx4 {vr(QF+4,4)}, v1, s[16:19], s38 offen offset:1024
    s_lshl_b32 s40, s37, 17            ; (16+h)*131072
    s_lshl_b32 s41, s34, 10            ; w*1024
    s_add_u32 s40, s40, s41
    s_add_u32 s42, s40, {V_OFF}        ; V base
    s_add_u32 s40, s40, {K_OFF}        ; K base
    s_mov_b32 s48, 0xffffffff
    s_mov_b32 s49, 0""")
    def local_loads():
        a(f"""s_cmp_eq_u32 s36, 1
        s_cbranch_scc0 Lk2_noll
        s_lshl_b32 s38, s32, 6
        s_add_u32 s39, s38, s35            ; h*64+qt
        s_sub_u32 s45, s35, 1
        s_max_i32 s45, s45, 0
        s_add_u32 s45, s38, s45            ; h*64+prev
        s_lshl_b32 s39, s39, 11
        s_lshl_b32 s45, s45, 11
        buffer_load_dwordx4 {vr(LQ,4)}, v1, s[16:19], s39 offen
        buffer_load_dwordx4 {vr(LQ+4,4)}, v1, s[16:19], s39 offen offset:1024
        s_add_u32 s46, s45, {K_OFF}
        buffer_load_dwordx4 {vr(LK0,4)}, v1, s[16:19], s46 offen
        buffer_load_dwordx4 {vr(LK0+4,4)}, v1, s[16:19], s46 offen offset:1024
        s_add_u32 s46, s39, {K_OFF}
        buffer_load_dwordx4 {vr(LK1,4)}, v1, s[16:19], s46 offen
        buffer_load_dwordx4 {vr(LK1+4,4)}, v1, s[16:19], s46 offen offset:1024
        s_add_u32 s46, s45, {V_OFF}
        buffer_load_dwordx4 {vr(LV0,4)}, v1, s[16:19], s46 offen offset:1024
        s_add_u32 s46, s39, {V_OFF}
        buffer_load_dwordx4 {vr(LV1,4)}, v1, s[16:19], s46 offen
        buffer_load_dwordx4 {vr(LV1+4,4)}, v1, s[16:19], s46 offen offset:1024""")
        a.label("Lk2_noll")
    def dma(c):
        slot = c % NS
        for u in range(CT // 2):
            a(f"""s_add_u32 s43, s40, {c*CB + u*8192}
            s_add_u32 m0, s41, {slot*CB + u*8192}
            s_add_u32 s44, s42, {c*CB + u*8192}
            buffer_load_dwordx4 v1, s[16:19], s43 offen lds
            s_add_u32 m0, s41, {VREG+slot*CB + u*8192}
            s_nop 0
            buffer_load_dwordx4 v1, s[16:19], s44 offen lds""")
    for c in range(PF): dma(c)

    def finalize(Oreg, soff, check=False):
        a(f"""v_mov_b32 v3, v{Oreg+12}
        v_mov_b32 v4, v{Oreg+12}
        s_nop 1
        v_permlane32_swap_b32 v3, v4
        v_rcp_f32 v5, v4""")
        if check:
            a(f"""v_mov_b32 v6, 0.5
            v_mov_b32 v7, {f32bits(2.0**40)}
            v_cmp_nge_f32 vcc, v4, v6
            v_cmp_nle_f32 s[60:61], v4, v7
            s_or_b64 s[60:61], s[60:61], vcc""")
        else:
            a("s_nop 0")
        for r in range(16):
            a(f"v_mul_f32 v{Oreg+r}, v5, v{Oreg+r}")
        for p in range(8):
            a(f"v_cvt_pk_bf16_f32 v{P+p}, v{Oreg+2*p}, v{Oreg+2*p+1}")
        a(f"""v_cndmask_b32 v{P+6}, 0, v{P+6}, s[48:49]
        v_cndmask_b32 v{P+7}, 0, v{P+7}, s[48:49]
        buffer_store_dwordx4 {vr(P,4)}, v1, s[16:19], {soff} offen{SF}
        buffer_store_dwordx4 {vr(P+4,4)}, v1, s[16:19], {soff} offen offset:1024{SF}""")

    a(f"""s_waitcnt vmcnt({(PF-1)*CT})
    s_barrier""")
    stamp(a, 1)
    a(f"""ds_read_b128 {vr(KF,4)}, v1
    ds_read_b128 {vr(KF+4,4)}, v1 offset:1024
    s_waitcnt lgkmcnt(0)
    v_mfma_f32_32x32x16_bf16 {vr(S0,16)}, {vr(KF,4)}, {vr(QF,4)}, 0
    v_mfma_f32_32x32x16_bf16 {vr(S0,16)}, {vr(KF+4,4)}, {vr(QF+4,4)}, {vr(S0,16)}""")
    for r in range(16):
        a(f"v_mov_b32 v{O+r}, 0")
    a(f"v_max3_f32 v3, v{S0}, v{S0+1}, v{S0+2}")
    for n in range(3, 15, 2):
        a(f"v_max3_f32 v3, v3, v{S0+n}, v{S0+n+1}")
    a(f"""v_max_f32 v3, v3, v{S0+15}
    v_mov_b32 v4, v3
    s_nop 1
    v_permlane32_swap_b32 v3, v4
    v_max_f32 v3, v3, v4""")
    a.label("Lk2_setci")
    stamp(a, 2)
    for r in range(16):
        a(f"v_sub_f32 v{CI+r}, 0, v3")
    lq = Q(); vq = Q()
    for c in range(1, PF):
        for _ in range(CT): vq.push(f"c{c}")
    def off(i):
        return ((i // CT) % NS) * CB + (i % CT) * 2048
    def kread(i):
        a(f"ds_read_b128 {vr(KF,4)}, v{VBK} offset:{off(i)}")
        a(f"ds_read_b128 {vr(KF+4,4)}, v{VBK} offset:{off(i)+1024}")
        lq.push(f"k{i}"); lq.push(f"k{i}")
    def vread(i):
        a(f"ds_read_b128 {vr(VF,4)}, v{VBV} offset:{off(i)}")
        a(f"ds_read_b128 {vr(VF+4,4)}, v{VBV} offset:{off(i)+1024}")
        lq.push(f"v{i}"); lq.push(f"v{i}")
    def wait(tag):
        n = lq.need(tag)
        if n is not None: a(f"s_waitcnt lgkmcnt({n})")
    def qk_a(i): a(f"v_mfma_f32_32x32x16_bf16 {vr(S[i%2],16)}, {vr(KF,4)}, {vr(QF,4)}, {vr(CI,16)}")
    def qk_b(i): a(f"v_mfma_f32_32x32x16_bf16 {vr(S[i%2],16)}, {vr(KF+4,4)}, {vr(QF+4,4)}, {vr(S[i%2],16)}")
    def pv_a(i): a(f"v_mfma_f32_32x32x16_bf16 {vr(O,16)}, {vr(VF,4)}, {vr(PB[i%2],4)}, {vr(O,16)}")
    def pv_b(i): a(f"v_mfma_f32_32x32x16_bf16 {vr(O,16)}, {vr(VF+4,4)}, {vr(PB[i%2]+4,4)}, {vr(O,16)}")
    kread(0)
    wait("k0")
    qk_a(0); qk_b(0)
    kread(1)
    a("s_nop 9")
    NT = 32
    for i in range(NT):
        c = i // CT
        if i % CT == SYNC:
            n = vq.need(f"c{c+1}")
            if n is not None and os.environ.get("NOBAR") != "1":
                a(f"s_waitcnt vmcnt({n})")
                a("s_barrier")
            if c + PF < NCH and os.environ.get('NODMA') != '1':
                dma(c + PF)
                for _ in range(CT): vq.push(f"c{c+PF}")
        if i == CT * (NCH - 2) + SYNC:
            a(f"buffer_load_dwordx4 {vr(T,4)}, v1, s[20:23], s64 offen")
        if i == CT * (NCH - 2) + SYNC:
            a("s_cmp_lg_u32 s70, 0")
            a("s_cbranch_scc1 Lk2_noll")
            local_loads()
        s = S[i % 2]; pb = PB[i % 2]
        def ex(j):
            a(f"v_exp_f32 v{s+j}, v{s+j}")
            if j % 2 == 1 and j >= 3:
                p = (j - 3) // 2
                a(f"v_cvt_pk_bf16_f32 v{pb+p}, v{s+2*p}, v{s+2*p+1}")
        if i + 1 < NT:
            wait(f"k{i+1}"); qk_a(i + 1)
        for j in range(0, 4): ex(j)
        if i + 1 < NT:
            qk_b(i + 1)
            if i + 2 < NT: kread(i + 2)
        for j in range(4, 8): ex(j)
        if i >= 1:
            wait(f"v{i-1}"); pv_a(i - 1)
        for j in range(8, 12): ex(j)
        if i >= 1:
            pv_b(i - 1)
        vread(i)
        for j in range(12, 16): ex(j)
        a("s_nop 0")
        a(f"v_cvt_pk_bf16_f32 v{pb+7}, v{s+14}, v{s+15}")
    wait(f"v{NT-1}")
    a("s_nop 0")
    pv_a(NT - 1); pv_b(NT - 1)
    stamp(a, 3)
    a(f"""s_and_b32 s37, s34, 3
    s_lshl_b32 s37, s37, 12
    s_add_u32 s37, s37, {COMB}
    v_add_u32 v6, s37, v1
    s_nop 12
    s_cmp_eq_u32 s36, 0
    s_cbranch_scc1 Lk2_e1""")
    for r in range(4):
        a(f"ds_write_b128 v6, {vr(O+4*r,4)} offset:{r*1024}")
    a("s_waitcnt lgkmcnt(0)")
    a.label("Lk2_e1")
    a("""s_barrier
    s_cmp_eq_u32 s36, 0
    s_cbranch_scc0 Lk2_local""")
    a("s_waitcnt vmcnt(0)")
    for r in range(4):
        a(f"ds_read_b128 {vr(T+4*r,4)}, v6 offset:{r*1024}")
    a(f"""s_add_u32 s46, s35, 64
    s_lshl_b32 s46, s46, 4
    s_add_u32 s46, s46, s32
    s_lshl_b32 s46, s46, 11
    s_add_u32 s46, s46, {O_OFF}
    s_waitcnt lgkmcnt(0)""")
    for r in range(16):
        a(f"v_add_f32 v{O+r}, v{O+r}, v{T+r}")
    finalize(O, "s46", check=True)
    a(f"""s_cmp_lg_u64 s[60:61], 0
    s_cselect_b32 s62, 1, 0
    v_mov_b32 v7, s62
    s_lshl_b32 s37, s34, 2
    s_add_u32 s37, s37, {FLAG}
    v_mov_b32 v6, s37
    ds_write_b32 v6, v7
    s_waitcnt lgkmcnt(0)
    s_branch Lk2_e2""")
    a.label("Lk2_local")
    OA = O; P2 = PB[1]
    a(f"""s_cmp_lg_u32 s70, 0
    s_cbranch_scc1 Lk2_e2
    v_and_b32 v3, 31, v2
    v_lshrrev_b32 v4, 5, v2
    v_lshlrev_b32 v4, 2, v4
    v_sub_u32 v8, v3, v4               ; u
    s_cmp_eq_u32 s35, 0
    s_cselect_b32 s46, 1056, 32
    v_add_u32 v9, s46, v8              ; u_prev
    v_mov_b32 v10, 0xff800000          ; -inf
    s_waitcnt vmcnt(0)
    v_mfma_f32_32x32x16_bf16 {vr(S0,16)}, {vr(LK0,4)}, {vr(LQ,4)}, 0
    v_mfma_f32_32x32x16_bf16 {vr(S0,16)}, {vr(LK0+4,4)}, {vr(LQ+4,4)}, {vr(S0,16)}
    v_mfma_f32_32x32x16_bf16 {vr(S1,16)}, {vr(LK1,4)}, {vr(LQ,4)}, 0
    v_mfma_f32_32x32x16_bf16 {vr(S1,16)}, {vr(LK1+4,4)}, {vr(LQ+4,4)}, {vr(S1,16)}""")
    items = [(S0 + j, 9, 8 * (j >> 2) + (j & 3)) for j in range(8, 16)] + [(S1 + j, 8, 8 * (j >> 2) + (j & 3)) for j in range(16)]
    first = True
    for b in range(0, 24, 8):
        grp = items[b:b + 8]
        for n, (reg, ub, cj) in enumerate(grp):
            a(f"v_subrev_u32 v{T+n}, {cj}, v{ub}")
            a(f"v_and_b32 v{T+n}, {(~14) & 0xffffffff}, v{T+n}")
        for n, (reg, ub, cj) in enumerate(grp):
            a(f"v_cmp_eq_u32 s[{52+2*n}:{53+2*n}], 0, v{T+n}")
        a("s_nop 1")
        for n, (reg, ub, cj) in enumerate(grp):
            a(f"v_cndmask_b32 v{reg}, v10, v{reg}, s[{52+2*n}:{53+2*n}]")
    regs = [it[0] for it in items]
    a(f"v_max3_f32 v3, v{regs[0]}, v{regs[1]}, v{regs[2]}")
    for n in range(3, 23, 2):
        a(f"v_max3_f32 v3, v3, v{regs[n]}, v{regs[n+1]}")
    a(f"""v_max_f32 v3, v3, v{regs[23]}
    v_mov_b32 v4, v3
    s_nop 1
    v_permlane32_swap_b32 v3, v4
    v_max_f32 v3, v3, v4""")
    for r in regs:
        a(f"v_sub_f32 v{r}, v{r}, v3")
    for r in regs:
        a(f"v_exp_f32 v{r}, v{r}")
    a("s_nop 0")
    for p in range(4):
        a(f"v_cvt_pk_bf16_f32 v{P2+p}, v{S0+8+2*p}, v{S0+9+2*p}")
    for p in range(8):
        a(f"v_cvt_pk_bf16_f32 v{P+p}, v{S1+2*p}, v{S1+2*p+1}")
    a(f"""s_nop 1
    v_mfma_f32_32x32x16_bf16 {vr(OA,16)}, {vr(LV0,4)}, {vr(P2,4)}, 0
    v_mfma_f32_32x32x16_bf16 {vr(OA,16)}, {vr(LV1,4)}, {vr(P,4)}, {vr(OA,16)}
    v_mfma_f32_32x32x16_bf16 {vr(OA,16)}, {vr(LV1+4,4)}, {vr(P+4,4)}, {vr(OA,16)}
    s_lshl_b32 s46, s35, 4
    s_add_u32 s46, s46, s32
    s_lshl_b32 s46, s46, 11
    s_add_u32 s46, s46, {O_OFF}
    s_nop 12""")
    finalize(OA, "s46")
    a.label("Lk2_e2")
    if STAMP: a("s_waitcnt vmcnt(0)")
    stamp(a, 4)
    stamp_flush(a, 5, 34)
    tl_end(a, 1, 34)
    a(f"""s_barrier
    s_cmp_lg_u32 s70, 0
    s_cbranch_scc1 Lk2_end
    v_mov_b32 v6, {FLAG}
    ds_read_b128 v[8:11], v6
    s_waitcnt lgkmcnt(0)
    v_or3_b32 v8, v8, v9, v10
    v_or_b32 v8, v8, v11
    s_nop 0
    v_readfirstlane_b32 s62, v8
    s_nop 3
    s_cmp_eq_u32 s62, 0
    s_cbranch_scc1 Lk2_end""")
    a(f"""s_mov_b32 s70, 1
    v_mov_b32 v12, 0xff800000
    s_lshl_b32 s37, s36, 12
    v_add_u32 v13, s37, v1
    s_mov_b32 s63, 0""")
    a.label("Lk2_fb")
    a(f"""s_barrier
    s_lshl_b32 s43, s63, 13
    s_add_u32 s43, s43, s40
    s_mov_b32 m0, s41
    s_nop 0
    buffer_load_dwordx4 v1, s[16:19], s43 offen lds
    s_waitcnt vmcnt(0)
    s_barrier""")
    for u in range(2):
        a(f"""ds_read_b128 {vr(KF,4)}, v13 offset:{u*2048}
        ds_read_b128 {vr(KF+4,4)}, v13 offset:{u*2048+1024}
        s_waitcnt lgkmcnt(0)
        v_mfma_f32_32x32x16_bf16 {vr(S0,16)}, {vr(KF,4)}, {vr(QF,4)}, 0
        v_mfma_f32_32x32x16_bf16 {vr(S0,16)}, {vr(KF+4,4)}, {vr(QF+4,4)}, {vr(S0,16)}
        s_nop 15""")
        for n in range(0, 16, 2):
            a(f"v_max3_f32 v12, v12, v{S0+n}, v{S0+n+1}")
    a(f"""s_add_u32 s63, s63, 1
    s_cmp_lt_u32 s63, 16
    s_cbranch_scc1 Lk2_fb
    v_mov_b32 v4, v12
    s_nop 1
    v_permlane32_swap_b32 v12, v4
    v_max_f32 v3, v12, v4
    s_lshl_b32 s37, s34, 8
    s_add_u32 s37, s37, {EXCH}
    v_lshlrev_b32 v5, 2, v2
    v_add_u32 v6, s37, v5
    ds_write_b32 v6, v3
    s_xor_b32 s37, s34, 4
    s_lshl_b32 s37, s37, 8
    s_add_u32 s37, s37, {EXCH}
    v_add_u32 v6, s37, v5
    s_waitcnt lgkmcnt(0)
    s_barrier
    ds_read_b32 v4, v6
    s_waitcnt lgkmcnt(0)
    v_max_f32 v3, v3, v4""")
    for r in range(16):
        a(f"v_mov_b32 v{O+r}, 0")
    for c in range(PF): dma(c)
    a(f"""s_waitcnt vmcnt({(PF-1)*CT})
    s_barrier
    s_branch Lk2_setci""")
    a.label("Lk2_end")
    a("s_endpgm")
    return a.text(), 256 if STAMP else 176, EXCH + 2048
```

```python
import math, struct
def f32bits(x):
    return struct.unpack("<I", struct.pack("<f", x))[0]
MB = 1 << 20
Q_OFF, K_OFF, V_OFF, O_OFF, G_OFF = 0, 4 * MB, 8 * MB, 12 * MB, 16 * MB
WS_USED = 16 * MB + 8192
CSCALE = (28 ** -0.5) * math.log2(math.e)
def srd(a, d, base, nbytes):
    a(f"""s_mov_b32 s{d}, s{base}
    s_and_b32 s{d+1}, s{base+1}, 0xffff
    s_mov_b32 s{d+2}, {nbytes}
    s_mov_b32 s{d+3}, 0x00020000""")

import os
STAMP = os.environ.get("STAMP", "0") == "1"
def stamp(a, n):
    if STAMP:
        a(f"""s_memtime s[{80+2*n}:{81+2*n}]""")
        if n == 0:
            a("s_memrealtime s[96:97]")
_sfc = [0]
def stamp_flush(a, n, wave_sgpr):
    _sfc[0] += 1; uid = _sfc[0]
    if STAMP:
        a(f"""s_waitcnt lgkmcnt(0)
        s_load_dwordx2 s[76:77], s[0:1], 64
        s_waitcnt lgkmcnt(0)
        s_mov_b32 s72, s76
        s_and_b32 s73, s77, 0xffff
        s_mov_b32 s74, 256
        s_mov_b32 s75, 0x00020000
        s_cmp_eq_u32 s{wave_sgpr}, 0
        s_cbranch_scc0 Lst_skip_{uid}
        s_mov_b32 s78, 0
        s_cmp_eq_u32 s2, 0
        s_cbranch_scc1 Lst_go_{uid}
        s_mov_b32 s78, 64
        s_cmp_eq_u32 s2, 101
        s_cbranch_scc0 Lst_skip_{uid}""")
        a.label(f"Lst_go_{uid}")
        a("v_mov_b32 v250, 0")
        a(f"""s_memrealtime s[98:99]
        s_waitcnt lgkmcnt(0)
        s_sub_u32 s79, s98, s96
        v_mov_b32 v251, s79
        buffer_store_dword v251, v250, s[72:75], s78 offen offset:28
        v_mov_b32 v251, s96
        buffer_store_dword v251, v250, s[72:75], s78 offen offset:24""")
        for i in range(n):
            a(f"""s_sub_u32 s79, s{80+2*i}, s80
            v_mov_b32 v251, s79
            buffer_store_dword v251, v250, s[72:75], s78 offen offset:{4*i}""")
        a.label(f"Lst_skip_{uid}")


SF = (' ' + os.environ['SF']) if os.environ.get('SF') else ''

TL = os.environ.get("TL", "0") == "1"
def tl_start(a):
    if TL:
        a("s_memrealtime s[96:97]")
        a("s_memtime s[94:95]")
def tl_end(a, kidx, wave_sgpr):
    if TL:
        a(f"""s_waitcnt vmcnt(0) lgkmcnt(0)
        s_memrealtime s[98:99]
        s_memtime s[92:93]
        s_load_dwordx2 s[76:77], s[0:1], 64
        s_waitcnt lgkmcnt(0)
        s_add_u32 s72, s76, {512*(2-kidx)}
        s_addc_u32 s73, s77, 0
        s_and_b32 s73, s73, 0xffff
        s_mov_b32 s74, 256
        s_mov_b32 s75, 0x00020000
        s_cmp_eq_u32 s{wave_sgpr}, 0
        s_cbranch_scc0 Ltl_skip_{kidx}
        s_cmp_eq_u32 s2, 0
        s_cbranch_scc0 Ltl_skip_{kidx}
        v_mov_b32 v130, 0
        v_mov_b32 v131, s96
        buffer_store_dword v131, v130, s[72:75], 0 offen offset:{16*kidx}
        s_sub_u32 s79, s98, s96
        v_mov_b32 v131, s79
        buffer_store_dword v131, v130, s[72:75], 0 offen offset:{16*kidx+4}
        s_sub_u32 s79, s92, s94
        v_mov_b32 v131, s79
        buffer_store_dword v131, v130, s[72:75], 0 offen offset:{16*kidx+8}""")
        a.label(f"Ltl_skip_{kidx}")
```

```python
import math, struct
def f32bits(x):
    return struct.unpack("<I", struct.pack("<f", x))[0]
MB = 1 << 20
Q_OFF, K_OFF, V_OFF, O_OFF, G_OFF = 0, 4 * MB, 8 * MB, 12 * MB, 16 * MB
WS_USED = 16 * MB + 8192
CSCALE = (28 ** -0.5) * math.log2(math.e)
def srd(a, d, base, nbytes):
    a(f"""s_mov_b32 s{d}, s{base}
    s_and_b32 s{d+1}, s{base+1}, 0xffff
    s_mov_b32 s{d+2}, {nbytes}
    s_mov_b32 s{d+3}, 0x00020000""")

import os
STAMP = os.environ.get("STAMP", "0") == "1"
def stamp(a, n):
    if STAMP:
        a(f"""s_memtime s[{80+2*n}:{81+2*n}]""")
        if n == 0:
            a("s_memrealtime s[96:97]")
_sfc = [0]
def stamp_flush(a, n, wave_sgpr):
    _sfc[0] += 1; uid = _sfc[0]
    if STAMP:
        a(f"""s_waitcnt lgkmcnt(0)
        s_load_dwordx2 s[76:77], s[0:1], 64
        s_waitcnt lgkmcnt(0)
        s_mov_b32 s72, s76
        s_and_b32 s73, s77, 0xffff
        s_mov_b32 s74, 256
        s_mov_b32 s75, 0x00020000
        s_cmp_eq_u32 s{wave_sgpr}, 0
        s_cbranch_scc0 Lst_skip_{uid}
        s_mov_b32 s78, 0
        s_cmp_eq_u32 s2, 0
        s_cbranch_scc1 Lst_go_{uid}
        s_mov_b32 s78, 64
        s_cmp_eq_u32 s2, 101
        s_cbranch_scc0 Lst_skip_{uid}""")
        a.label(f"Lst_go_{uid}")
        a("v_mov_b32 v250, 0")
        a(f"""s_memrealtime s[98:99]
        s_waitcnt lgkmcnt(0)
        s_sub_u32 s79, s98, s96
        v_mov_b32 v251, s79
        buffer_store_dword v251, v250, s[72:75], s78 offen offset:28
        v_mov_b32 v251, s96
        buffer_store_dword v251, v250, s[72:75], s78 offen offset:24""")
        for i in range(n):
            a(f"""s_sub_u32 s79, s{80+2*i}, s80
            v_mov_b32 v251, s79
            buffer_store_dword v251, v250, s[72:75], s78 offen offset:{4*i}""")
        a.label(f"Lst_skip_{uid}")


SF = ' ' + os.environ.get('SF', 'sc0 sc1')
SF3 = ' ' + os.environ.get('SF3', '')

TL = os.environ.get("TL", "0") == "1"
def tl_start(a):
    if TL:
        a("s_memrealtime s[96:97]")
        a("s_memtime s[94:95]")
def tl_end(a, kidx, wave_sgpr):
    if TL:
        a(f"""s_waitcnt vmcnt(0) lgkmcnt(0)
        s_memrealtime s[98:99]
        s_memtime s[92:93]
        s_load_dwordx2 s[76:77], s[0:1], 64
        s_waitcnt lgkmcnt(0)
        s_add_u32 s72, s76, {512*(2-kidx)}
        s_addc_u32 s73, s77, 0
        s_and_b32 s73, s73, 0xffff
        s_mov_b32 s74, 256
        s_mov_b32 s75, 0x00020000
        s_cmp_eq_u32 s{wave_sgpr}, 0
        s_cbranch_scc0 Ltl_skip_{kidx}
        s_cmp_eq_u32 s2, 0
        s_cbranch_scc0 Ltl_skip_{kidx}
        v_mov_b32 v130, 0
        v_mov_b32 v131, s96
        buffer_store_dword v131, v130, s[72:75], 0 offen offset:{16*kidx}
        s_sub_u32 s79, s98, s96
        v_mov_b32 v131, s79
        buffer_store_dword v131, v130, s[72:75], 0 offen offset:{16*kidx+4}
        s_sub_u32 s79, s92, s94
        v_mov_b32 v131, s79
        buffer_store_dword v131, v130, s[72:75], 0 offen offset:{16*kidx+8}""")
        a.label(f"Ltl_skip_{kidx}")

WGT = os.environ.get("WGT", "0") == "1"
def wgt_start(a):
    if WGT:
        a("s_memrealtime s[96:97]")
def wgt_end(a, kidx, wave_sgpr, ws_srd):
    if WGT:
        a(f"""s_waitcnt vmcnt(0) lgkmcnt(0)
        s_memrealtime s[98:99]
        s_getreg_b32 s79, hwreg(HW_REG_XCC_ID)
        s_load_dwordx2 s[76:77], s[0:1], 72
        s_waitcnt lgkmcnt(0)
        s_mov_b32 s72, s76
        s_and_b32 s73, s77, 0xffff
        s_mov_b32 s74, {32<<20}
        s_mov_b32 s75, 0x00020000
        s_cmp_eq_u32 s{wave_sgpr}, 0
        s_cbranch_scc0 Lwgt_skip_{kidx}
        s_lshl_b32 s78, s2, 4
        s_add_u32 s78, s78, {(20<<20) + kidx*65536}
        v_mov_b32 v130, 0
        v_mov_b32 v131, s96
        buffer_store_dword v131, v130, s[72:75], s78 offen
        v_mov_b32 v131, s98
        buffer_store_dword v131, v130, s[72:75], s78 offen offset:4
        v_mov_b32 v131, s79
        buffer_store_dword v131, v130, s[72:75], s78 offen offset:8""")
        a.label(f"Lwgt_skip_{kidx}")
```

```python
from asmlib import *
import math, struct, os
from gen_common import *

def gen_k1():
    a = Asm()
    ACC = 16
    WF = 64
    XFR = 88
    PK0 = 96
    XA = 120
    WA = 124
    GF = 128
    WD = 136
    XS = 16384; WB = 3 * XS; WS = 64 * 448
    GA = WB + 3 * WS
    a("""s_cmp_ge_u32 s2, 256
    s_cbranch_scc1 Lk1_end
    s_load_dwordx2 s[4:5], s[0:1], 0""")
    stamp(a, 0)
    tl_start(a)
    wgt_start(a)
    a("""s_load_dwordx2 s[6:7], s[0:1], 8
    s_load_dwordx2 s[8:9], s[0:1], 32
    s_load_dwordx2 s[10:11], s[0:1], 48
    s_load_dwordx2 s[12:13], s[0:1], 72
    s_and_b32 s32, s2, 7
    s_lshr_b32 s33, s2, 3
    s_and_b32 s34, s32, 1
    s_lshl_b32 s34, s34, 3
    s_and_b32 s36, s33, 7
    s_add_u32 s34, s34, s36            ; rb
    s_lshr_b32 s35, s32, 1
    s_lshl_b32 s35, s35, 2
    s_lshr_b32 s36, s33, 3
    s_add_u32 s35, s35, s36            ; G
    s_lshr_b32 s36, s35, 3             ; type
    s_and_b32 s37, s35, 7              ; g
    v_lshrrev_b32 v1, 6, v0
    v_and_b32 v2, 63, v0
    v_readfirstlane_b32 s38, v1        ; w
    s_waitcnt lgkmcnt(0)""")
    srd(a, 16, 4, 2048 * 896)
    a("""s_cmp_eq_u32 s36, 0
    s_cselect_b32 s6, s6, s8
    s_cselect_b32 s7, s7, s9""")
    srd(a, 20, 6, 448 * 2688)
    srd(a, 24, 12, WS_USED)
    srd(a, 28, 10, 896)
    a(f"""s_and_b32 s56, s38, 3              ; rt
    s_lshr_b32 s57, s38, 2             ; half
    s_lshl_b32 s39, s34, 2
    s_add_u32 s39, s39, s56            ; stile
    s_mul_i32 s58, s37, 6
    s_mul_i32 s59, s57, 3
    s_add_u32 s58, s58, s59            ; slot0
    s_lshl_b32 s40, s34, 7
    s_lshl_b32 s43, s38, 4
    s_add_u32 s40, s40, s43
    s_mul_i32 s40, s40, 896
    s_lshl_b32 s41, s38, 11
    s_mul_i32 s42, s37, 336
    s_lshl_b32 s45, s38, 10
    s_add_u32 s45, s45, {WB}
    v_lshrrev_b32 v3, 3, v2
    v_mul_u32_u24 v4, 896, v3
    v_and_b32 v3, 7, v2
    v_lshrrev_b32 v6, 4, v2
    v_xor_b32 v3, v3, v6
    v_lshlrev_b32 v6, 4, v3
    v_xor_b32 v7, 64, v6
    v_add_u32 v5, v4, v7
    v_add_u32 v4, v4, v6
    ; W DMA voffsets: instr i = w + 8q ; n = 64 i + l ; row = n/28 ; piece = n%28
    s_lshl_b32 s43, s38, 6
    v_add_u32 v3, s43, v2
    s_mov_b32 s44, 0x92492493""")
    for q in range(4):
        a(f"""v_add_u32 v6, {512*q}, v3
        v_lshrrev_b32 v7, 2, v6
        v_mul_hi_u32 v7, v7, s44
        v_lshrrev_b32 v7, 2, v7            ; row = n/28
        v_mul_u32_u24 v8, 28, v7
        v_sub_u32 v8, v6, v8               ; piece
        v_mul_u32_u24 v7, 2688, v7
        v_lshl_add_u32 v7, v8, 4, v7
        v_cmp_gt_u32 vcc, 22, v8
        v_mov_b32 v9, 0x7ff00000
        s_nop 0
        v_cndmask_b32 v{WD+q}, v9, v7, vcc""")
    a(f"""; gate: G==0, half==0 waves
    s_add_u32 s43, s35, s57
    s_cmp_eq_u32 s43, 0
    s_cselect_b32 s53, 1, 0
    s_mov_b32 s54, 0x10000000
    s_mov_b32 s55, 0x10000000
    v_lshrrev_b32 v3, 5, v2
    v_lshlrev_b32 v13, 4, v3
    v_add_u32 v13, {GA}, v13
    v_lshlrev_b32 v12, 4, v2
    s_cmp_eq_u32 s53, 1
    s_cbranch_scc0 Lk1_nog0
    s_mov_b32 m0, {GA}
    s_nop 0
    buffer_load_dwordx4 v12, s[28:31], 0 offen lds""")
    a.label("Lk1_nog0")
    uid = [0]
    def dma_part(kc, part):
        st = kc % 3
        if part == 0:
            for e in range(2):
                a(f"""s_add_u32 m0, s41, {st*XS + e*1024}
                s_add_u32 s43, s40, {e*8*896 + kc*128}
                buffer_load_dwordx4 v{4+e}, s[16:19], s43 offen lds""")
        elif part < 3:
            qs = [0] if part == 1 else [1, 2]
            a(f"s_add_u32 s43, s42, {kc*64*2688}")
            for q in qs:
                a(f"""s_add_u32 m0, s45, {st*WS + q*8192}
                s_nop 0
                buffer_load_dwordx4 v{WD+q}, s[20:23], s43 offen lds""")
        else:
            uid[0] += 1
            a(f"""s_cmp_lt_u32 s38, 4
            s_cbranch_scc0 Lk1_d{uid[0]}
            s_add_u32 s43, s42, {kc*64*2688}
            s_add_u32 m0, s45, {st*WS + 3*8192}
            s_nop 0
            buffer_load_dwordx4 v{WD+3}, s[20:23], s43 offen lds""")
            a.label(f"Lk1_d{uid[0]}")
    def dma(kc):
        for p in range(4): dma_part(kc, p)
    dma(0); dma(1)
    a(f"""v_and_b32 v3, 31, v2
    v_lshrrev_b32 v8, 1, v3
    v_and_b32 v8, 7, v8                ; g(row)
    v_lshrrev_b32 v9, 5, v2            ; hh
    v_xor_b32 v8, v8, v9
    v_lshlrev_b32 v8, 4, v8
    v_lshlrev_b32 v3, 7, v3
    s_lshl_b32 s43, s56, 12
    v_add3_u32 v{XA}, v3, v8, s43
    v_xor_b32 v{XA+1}, 32, v{XA}
    v_xor_b32 v{XA+2}, 64, v{XA}
    v_xor_b32 v{XA+3}, 96, v{XA}
    v_lshrrev_b32 v3, 5, v2
    v_lshlrev_b32 v3, 3, v3            ; hh*8
    v_and_b32 v8, 15, v2
    v_lshrrev_b32 v8, 2, v8            ; r
    v_add_u32 v3, v3, v8
    v_mul_u32_u24 v11, 448, v3
    v_lshrrev_b32 v3, 4, v2
    v_and_b32 v3, 1, v3
    v_lshlrev_b32 v3, 5, v3            ; colhalf*32
    v_add_u32 v11, v11, v3
    v_and_b32 v3, 3, v2
    v_lshlrev_b32 v3, 3, v3
    v_add_u32 v11, v11, v3
    s_mul_i32 s43, s57, 168
    s_add_u32 s43, s43, {WB}
    v_add_u32 v{WA}, s43, v11
    v_add_u32 v{WA+1}, {WS}, v{WA}
    v_add_u32 v{WA+2}, {2*WS}, v{WA}
    s_mov_b32 s48, 0xffffffff
    s_mov_b32 s49, 0
    s_mov_b32 s50, 0x0fffffff
    s_mov_b32 s51, 0x0fffffff          ; (l&31)<28 mask
    v_and_b32 v3, 31, v2
    v_mov_b32 v9, 0x3f803f80
    v_cmp_eq_u32 vcc, 28, v3
    s_nop 1
    v_cndmask_b32 v9, 0, v9, vcc
    s_cmp_ge_u32 s58, 32
    s_cbranch_scc1 Lk1_var2
    s_cmp_eq_u32 s58, 30
    s_cbranch_scc1 Lk1_var1""")
    for var, pat in enumerate([(0, 0, 0), (0, 0, 1), (1, 1, 1)]):
        if var: a.label(f"Lk1_var{var}")
        def rd(ks):
            kc, m = ks >> 2, ks & 3
            st = kc % 3
            b = WF + (ks % 2) * 12
            if var == 0:
                a(f"""s_cmp_eq_u32 s53, 1
                s_cbranch_scc0 Lk1_gr{ks}
                ds_read_b128 {vr(GF+4*(ks%2),4)}, v13 offset:{ks*32}""")
                a.label(f"Lk1_gr{ks}")
            a(f"ds_read_b128 {vr(XFR+4*(ks%2),4)}, v{XA+m} offset:{st*XS}")
            for j in range(3):
                off = m * 16 * 448 + j * 56
                a(f"ds_read_b64_tr_b16 {vr(b+4*j,2)}, v{WA+st} offset:{off}")
                a(f"ds_read_b64_tr_b16 {vr(b+4*j+2,2)}, v{WA+st} offset:{off+1792}")
        for kc in range(7):
            a(f"s_waitcnt vmcnt({5 if kc < 6 else 0})")
            a("s_barrier")
            if kc == 0 and var == 0: stamp(a, 1)
            rd(4 * kc)
            for m in range(4):
                ks = 4 * kc + m
                if m < 3:
                    rd(ks + 1)
                a(f"s_waitcnt lgkmcnt({7 if m<3 else 0})")
                b = WF + (ks % 2) * 12
                x = vr(XFR + 4 * (ks % 2), 4)
                if var == 0:
                    a(f"""s_cmp_eq_u32 s53, 1
                    s_cbranch_scc0 Lk1_ng{ks}""")
                    for q in range(4):
                        a(f"v_cndmask_b32 v{b+q}, v{b+q}, v{GF+4*(ks%2)+q}, s[54:55]")
                    a("s_nop 1")
                    a.label(f"Lk1_ng{ks}")
                for j in range(3):
                    c = "0" if ks == 0 else vr(ACC + 16 * j, 16)
                    if pat[j] == 0:
                        a(f"v_mfma_f32_32x32x16_bf16 {vr(ACC+16*j,16)}, {vr(b+4*j,4)}, {x}, {c}")
                    else:
                        a(f"v_mfma_f32_32x32x16_bf16 {vr(ACC+16*j,16)}, {x}, {vr(b+4*j,4)}, {c}")
                if kc + 2 < 7: dma_part(kc + 2, m)
        if var == 0: stamp(a, 2)
        a("s_nop 15")
        if var == 0:
            a(f"""s_cmp_eq_u32 s53, 1
            s_cbranch_scc0 Lk1_nogate2
            v_cvt_pk_bf16_f32 v10, v{ACC+12}, v{ACC+12}
            v_lshlrev_b32 v10, 16, v10
            v_mul_f32 v10, {f32bits(-math.log2(math.e))}, v10
            v_exp_f32 v10, v10
            s_nop 0
            v_add_f32 v10, 1.0, v10
            v_rcp_f32 v10, v10
            s_nop 0
            v_cvt_pk_bf16_f32 v10, v10, v10
            v_lshlrev_b32 v10, 16, v10
            v_and_b32 v3, 31, v2
            v_lshlrev_b32 v3, 2, v3
            s_lshl_b32 s44, s39, 7
            s_add_u32 s44, s44, {G_OFF}
            s_mov_b32 exec_lo, 0
            buffer_store_dword v10, v3, s[24:27], s44 offen
            s_mov_b32 exec_lo, -1""")
            a.label("Lk1_nogate2")
        PK = PK0
        for j in range(3):
            A = ACC + 16 * j
            a(f"""s_add_u32 s43, s58, {j}
            s_lshr_b32 s44, s43, 4
            s_and_b32 s43, s43, 15
            s_lshl_b32 s46, s36, 4
            s_add_u32 s43, s43, s46
            s_lshl_b32 s43, s43, 6
            s_add_u32 s43, s43, s39
            s_lshl_b32 s43, s43, 11
            s_lshl_b32 s46, s44, 22
            s_add_u32 s43, s43, s46""")
            if pat[j] == 0:
                a(f"""s_cmp_eq_u32 s44, 0
                s_cselect_b32 s52, {f32bits(CSCALE)}, 1.0""")
                for r in range(16):
                    a(f"v_mul_f32 v{A+r}, s52, v{A+r}")
            for p in range(8):
                a(f"v_cvt_pk_bf16_f32 v{PK+p}, v{A+2*p}, v{A+2*p+1}")
            if pat[j] == 0:
                a(f"v_cndmask_b32 v{PK+6}, 0, v{PK+6}, s[48:49]")
                a(f"v_cndmask_b32 v{PK+7}, 0, v{PK+7}, s[48:49]")
            else:
                for p in range(8):
                    a(f"v_cndmask_b32 v{PK+p}, v9, v{PK+p}, s[50:51]")
            a(f"buffer_store_dwordx4 {vr(PK,4)}, v12, s[24:27], s43 offen{SF}")
            a(f"buffer_store_dwordx4 {vr(PK+4,4)}, v12, s[24:27], s43 offen offset:1024{SF}")
            PK += 8
        if var < 2: a("s_branch Lk1_fin")
    a.label("Lk1_fin")
    if STAMP:
        a("s_waitcnt vmcnt(0)")
    stamp(a, 3)
    stamp_flush(a, 4, 38)
    tl_end(a, 0, 38)
    wgt_end(a, 0, 38, 0)
    a.label("Lk1_end")
    a("s_endpgm")
    return a.text(), 256 if STAMP else 144, GA + 1024
```

```python
from asmlib import *
import math, struct, os
from gen_common import *

class Q:
    def __init__(self): self.q = []
    def push(self, tag): self.q.append(tag)
    def need(self, tag):
        last = -1
        for i, t in enumerate(self.q):
            if t == tag: last = i
        if last < 0: return None
        n = len(self.q) - 1 - last
        self.q = self.q[last + 1:]
        return n

def gen_k2():
    a = Asm()
    QF, KF, VF, S0, S1, O, CI = 16, 24, 32, 48, 64, 80, 96
    PB = [40, 112]
    VBK, VBV = 120, 121
    LQ, LK0, LK1, LV0, LV1 = 124, 132, 140, 148, 152
    T = 160
    CT = int(os.environ.get('CT', '4'))
    CB = CT * 4096
    NS = 5 if CT == 2 else 4
    NCH = 32 // CT
    PF = 3
    SYNC = 0 if CT == 2 else CT - 2
    VREG = NS * CB
    COMB = 2 * VREG; FLAG = COMB + 16384; EXCH = FLAG + 256
    S = [S0, S1]
    P = PB[0]
    a("""s_cmp_ge_u32 s2, 256
    s_cbranch_scc1 Lk2_end
    s_load_dwordx2 s[12:13], s[0:1], 72
    s_load_dwordx2 s[4:5], s[0:1], 16
    s_load_dwordx2 s[6:7], s[0:1], 40""")
    stamp(a, 0)
    tl_start(a)
    wgt_start(a)
    a(f"""s_and_b32 s32, s2, 7
    s_lshr_b32 s33, s2, 3
    s_lshl_b32 s32, s32, 1
    s_and_b32 s37, s33, 1
    s_add_u32 s32, s32, s37            ; h
    s_lshr_b32 s33, s33, 1             ; qb
    v_lshrrev_b32 v3, 6, v0
    v_and_b32 v2, 63, v0
    v_readfirstlane_b32 s34, v3        ; w
    v_lshlrev_b32 v1, 4, v2            ; lane*16
    s_mov_b32 s70, 0
    s_and_b32 s37, s34, 3
    s_lshl_b32 s35, s33, 2
    s_add_u32 s35, s35, s37            ; qt
    s_lshr_b32 s36, s34, 2             ; ksp
    s_mul_i32 s37, s36, {CT*2048}
    v_add_u32 v{VBK}, s37, v1
    v_add_u32 v{VBV}, {VREG}, v{VBK}
    s_waitcnt lgkmcnt(0)""")
    srd(a, 16, 12, WS_USED)
    a("""s_lshl_b32 s64, s2, 3
    s_add_u32 s64, s64, s34
    s_cmp_lt_u32 s64, 392
    s_cselect_b32 s4, s4, s6
    s_cselect_b32 s5, s5, s7
    s_sub_u32 s65, s64, 392
    s_cselect_b32 s64, s64, s65
    s_lshl_b32 s64, s64, 10""")
    srd(a, 20, 4, 448 * 896)
    a(f"""s_add_u32 s37, s32, 16
    s_lshl_b32 s38, s37, 6
    s_add_u32 s38, s38, s35
    s_lshl_b32 s38, s38, 11
    buffer_load_dwordx4 {vr(QF,4)}, v1, s[16:19], s38 offen
    buffer_load_dwordx4 {vr(QF+4,4)}, v1, s[16:19], s38 offen offset:1024
    s_lshl_b32 s40, s37, 17            ; (16+h)*131072
    s_lshl_b32 s41, s34, 10            ; w*1024
    s_add_u32 s40, s40, s41
    s_add_u32 s42, s40, {V_OFF}        ; V base
    s_add_u32 s40, s40, {K_OFF}        ; K base
    s_mov_b32 s48, 0xffffffff
    s_mov_b32 s49, 0""")
    def local_loads():
        a(f"""s_cmp_eq_u32 s36, 1
        s_cbranch_scc0 Lk2_noll
        s_lshl_b32 s38, s32, 6
        s_add_u32 s39, s38, s35            ; h*64+qt
        s_sub_u32 s45, s35, 1
        s_max_i32 s45, s45, 0
        s_add_u32 s45, s38, s45            ; h*64+prev
        s_lshl_b32 s39, s39, 11
        s_lshl_b32 s45, s45, 11
        buffer_load_dwordx4 {vr(LQ,4)}, v1, s[16:19], s39 offen
        buffer_load_dwordx4 {vr(LQ+4,4)}, v1, s[16:19], s39 offen offset:1024
        s_add_u32 s46, s45, {K_OFF}
        buffer_load_dwordx4 {vr(LK0,4)}, v1, s[16:19], s46 offen
        buffer_load_dwordx4 {vr(LK0+4,4)}, v1, s[16:19], s46 offen offset:1024
        s_add_u32 s46, s39, {K_OFF}
        buffer_load_dwordx4 {vr(LK1,4)}, v1, s[16:19], s46 offen
        buffer_load_dwordx4 {vr(LK1+4,4)}, v1, s[16:19], s46 offen offset:1024
        s_add_u32 s46, s45, {V_OFF}
        buffer_load_dwordx4 {vr(LV0,4)}, v1, s[16:19], s46 offen offset:1024
        s_add_u32 s46, s39, {V_OFF}
        buffer_load_dwordx4 {vr(LV1,4)}, v1, s[16:19], s46 offen
        buffer_load_dwordx4 {vr(LV1+4,4)}, v1, s[16:19], s46 offen offset:1024""")
        a.label("Lk2_noll")
    def dma(c, us=None):
        slot = c % NS
        for u in (range(CT // 2) if us is None else us):
            a(f"""s_add_u32 s43, s40, {c*CB + u*8192}
            s_add_u32 m0, s41, {slot*CB + u*8192}
            s_add_u32 s44, s42, {c*CB + u*8192}
            buffer_load_dwordx4 v1, s[16:19], s43 offen lds
            s_add_u32 m0, s41, {VREG+slot*CB + u*8192}
            s_nop 0
            buffer_load_dwordx4 v1, s[16:19], s44 offen lds""")
    for c in range(PF - 1): dma(c)

    def finalize(Oreg, soff, check=False):
        a(f"""v_mov_b32 v3, v{Oreg+12}
        v_mov_b32 v4, v{Oreg+12}
        s_nop 1
        v_permlane32_swap_b32 v3, v4
        v_rcp_f32 v5, v4""")
        if check:
            a(f"""v_mov_b32 v6, 0.5
            v_mov_b32 v7, {f32bits(2.0**40)}
            v_cmp_nge_f32 vcc, v4, v6
            v_cmp_nle_f32 s[60:61], v4, v7
            s_or_b64 s[60:61], s[60:61], vcc""")
        else:
            a("s_nop 0")
        for r in range(16):
            a(f"v_mul_f32 v{Oreg+r}, v5, v{Oreg+r}")
        for p in range(8):
            a(f"v_cvt_pk_bf16_f32 v{P+p}, v{Oreg+2*p}, v{Oreg+2*p+1}")
        a(f"""v_cndmask_b32 v{P+6}, 0, v{P+6}, s[48:49]
        v_cndmask_b32 v{P+7}, 0, v{P+7}, s[48:49]
        buffer_store_dwordx4 {vr(P,4)}, v1, s[16:19], {soff} offen{SF}
        buffer_store_dwordx4 {vr(P+4,4)}, v1, s[16:19], {soff} offen offset:1024{SF}""")

    a(f"""s_waitcnt vmcnt({(PF-2)*CT})
    s_barrier""")
    stamp(a, 1)
    a(f"""ds_read_b128 {vr(KF,4)}, v1
    ds_read_b128 {vr(KF+4,4)}, v1 offset:1024
    s_waitcnt lgkmcnt(0)
    v_mfma_f32_32x32x16_bf16 {vr(S0,16)}, {vr(KF,4)}, {vr(QF,4)}, 0
    v_mfma_f32_32x32x16_bf16 {vr(S0,16)}, {vr(KF+4,4)}, {vr(QF+4,4)}, {vr(S0,16)}""")
    dma(PF - 1)
    for r in range(16):
        a(f"v_mov_b32 v{O+r}, 0")
    a(f"v_max3_f32 v3, v{S0}, v{S0+1}, v{S0+2}")
    for n in range(3, 15, 2):
        a(f"v_max3_f32 v3, v3, v{S0+n}, v{S0+n+1}")
    a(f"""v_max_f32 v3, v3, v{S0+15}
    v_mov_b32 v4, v3
    s_nop 1
    v_permlane32_swap_b32 v3, v4
    v_max_f32 v3, v3, v4""")
    a.label("Lk2_setci")
    stamp(a, 2)
    for r in range(16):
        a(f"v_sub_f32 v{CI+r}, 0, v3")
    lq = Q(); vq = Q()
    for c in range(1, PF):
        for _ in range(CT): vq.push(f"c{c}")
    def off(i):
        return ((i // CT) % NS) * CB + (i % CT) * 2048
    def kread(i):
        a(f"ds_read_b128 {vr(KF,4)}, v{VBK} offset:{off(i)}")
        a(f"ds_read_b128 {vr(KF+4,4)}, v{VBK} offset:{off(i)+1024}")
        lq.push(f"k{i}"); lq.push(f"k{i}")
    def vread(i):
        a(f"ds_read_b128 {vr(VF,4)}, v{VBV} offset:{off(i)}")
        a(f"ds_read_b128 {vr(VF+4,4)}, v{VBV} offset:{off(i)+1024}")
        lq.push(f"v{i}"); lq.push(f"v{i}")
    def wait(tag):
        n = lq.need(tag)
        if n is not None: a(f"s_waitcnt lgkmcnt({n})")
    def qk_a(i): a(f"v_mfma_f32_32x32x16_bf16 {vr(S[i%2],16)}, {vr(KF,4)}, {vr(QF,4)}, {vr(CI,16)}")
    def qk_b(i): a(f"v_mfma_f32_32x32x16_bf16 {vr(S[i%2],16)}, {vr(KF+4,4)}, {vr(QF+4,4)}, {vr(S[i%2],16)}")
    def pv_a(i): a(f"v_mfma_f32_32x32x16_bf16 {vr(O,16)}, {vr(VF,4)}, {vr(PB[i%2],4)}, {vr(O,16)}")
    def pv_b(i): a(f"v_mfma_f32_32x32x16_bf16 {vr(O,16)}, {vr(VF+4,4)}, {vr(PB[i%2]+4,4)}, {vr(O,16)}")
    kread(0)
    wait("k0")
    qk_a(0); qk_b(0)
    kread(1)
    a("s_nop 9")
    NT = 32
    for i in range(NT):
        c = i // CT
        if i % CT == SYNC:
            n = vq.need(f"c{c+1}")
            if n is not None and os.environ.get("NOBAR") != "1":
                a(f"s_waitcnt vmcnt({n})")
                a("s_barrier")
        pend = None
        if (i % CT) - SYNC in range(CT // 2) and c + PF < NCH:
            pend = (c + PF, (i % CT) - SYNC)
        if i == CT * (NCH - 2) + SYNC:
            a(f"buffer_load_dwordx4 {vr(T,4)}, v1, s[20:23], s64 offen")
        if i == CT * (NCH - 2) + SYNC:
            a("s_cmp_lg_u32 s70, 0")
            a("s_cbranch_scc1 Lk2_noll")
            local_loads()
        s = S[i % 2]; pb = PB[i % 2]
        def ex(j):
            a(f"v_exp_f32 v{s+j}, v{s+j}")
            if j % 2 == 1 and j >= 3:
                p = (j - 3) // 2
                a(f"v_cvt_pk_bf16_f32 v{pb+p}, v{s+2*p}, v{s+2*p+1}")
        if i + 1 < NT:
            wait(f"k{i+1}"); qk_a(i + 1)
        for j in range(0, 4): ex(j)
        if i + 1 < NT:
            qk_b(i + 1)
            if i + 2 < NT: kread(i + 2)
        for j in range(4, 8): ex(j)
        if pend is not None:
            dma(pend[0], [pend[1]]); vq.push(f"c{pend[0]}"); vq.push(f"c{pend[0]}")
        if i >= 1:
            wait(f"v{i-1}"); pv_a(i - 1)
        for j in range(8, 12): ex(j)
        if i >= 1:
            pv_b(i - 1)
        vread(i)
        for j in range(12, 16): ex(j)
        a("s_nop 0")
        a(f"v_cvt_pk_bf16_f32 v{pb+7}, v{s+14}, v{s+15}")
    wait(f"v{NT-1}")
    a("s_nop 0")
    pv_a(NT - 1); pv_b(NT - 1)
    stamp(a, 3)
    a(f"""s_and_b32 s37, s34, 3
    s_lshl_b32 s37, s37, 12
    s_add_u32 s37, s37, {COMB}
    v_add_u32 v6, s37, v1
    s_nop 12
    s_cmp_eq_u32 s36, 0
    s_cbranch_scc1 Lk2_e1""")
    for r in range(4):
        a(f"ds_write_b128 v6, {vr(O+4*r,4)} offset:{r*1024}")
    a("s_waitcnt lgkmcnt(0)")
    a.label("Lk2_e1")
    a("""s_barrier
    s_cmp_eq_u32 s36, 0
    s_cbranch_scc0 Lk2_local""")
    a("s_waitcnt vmcnt(0)")
    for r in range(4):
        a(f"ds_read_b128 {vr(T+4*r,4)}, v6 offset:{r*1024}")
    a(f"""s_add_u32 s46, s35, 64
    s_lshl_b32 s46, s46, 4
    s_add_u32 s46, s46, s32
    s_lshl_b32 s46, s46, 11
    s_add_u32 s46, s46, {O_OFF}
    s_waitcnt lgkmcnt(0)""")
    for r in range(16):
        a(f"v_add_f32 v{O+r}, v{O+r}, v{T+r}")
    finalize(O, "s46", check=True)
    a(f"""s_cmp_lg_u64 s[60:61], 0
    s_cselect_b32 s62, 1, 0
    v_mov_b32 v7, s62
    s_lshl_b32 s37, s34, 2
    s_add_u32 s37, s37, {FLAG}
    v_mov_b32 v6, s37
    ds_write_b32 v6, v7
    s_waitcnt lgkmcnt(0)
    s_branch Lk2_e2""")
    a.label("Lk2_local")
    OA = O; P2 = PB[1]
    a(f"""s_cmp_lg_u32 s70, 0
    s_cbranch_scc1 Lk2_e2
    v_and_b32 v3, 31, v2
    v_lshrrev_b32 v4, 5, v2
    v_lshlrev_b32 v4, 2, v4
    v_sub_u32 v8, v3, v4               ; u
    s_cmp_eq_u32 s35, 0
    s_cselect_b32 s46, 1056, 32
    v_add_u32 v9, s46, v8              ; u_prev
    v_mov_b32 v10, 0xff800000          ; -inf
    s_waitcnt vmcnt(0)
    v_mfma_f32_32x32x16_bf16 {vr(S0,16)}, {vr(LK0,4)}, {vr(LQ,4)}, 0
    v_mfma_f32_32x32x16_bf16 {vr(S0,16)}, {vr(LK0+4,4)}, {vr(LQ+4,4)}, {vr(S0,16)}
    v_mfma_f32_32x32x16_bf16 {vr(S1,16)}, {vr(LK1,4)}, {vr(LQ,4)}, 0
    v_mfma_f32_32x32x16_bf16 {vr(S1,16)}, {vr(LK1+4,4)}, {vr(LQ+4,4)}, {vr(S1,16)}""")
    items = [(S0 + j, 9, 8 * (j >> 2) + (j & 3)) for j in range(8, 16)] + [(S1 + j, 8, 8 * (j >> 2) + (j & 3)) for j in range(16)]
    first = True
    for b in range(0, 24, 8):
        grp = items[b:b + 8]
        for n, (reg, ub, cj) in enumerate(grp):
            a(f"v_subrev_u32 v{T+n}, {cj}, v{ub}")
            a(f"v_and_b32 v{T+n}, {(~14) & 0xffffffff}, v{T+n}")
        for n, (reg, ub, cj) in enumerate(grp):
            a(f"v_cmp_eq_u32 s[{52+2*n}:{53+2*n}], 0, v{T+n}")
        a("s_nop 1")
        for n, (reg, ub, cj) in enumerate(grp):
            a(f"v_cndmask_b32 v{reg}, v10, v{reg}, s[{52+2*n}:{53+2*n}]")
    regs = [it[0] for it in items]
    a(f"v_max3_f32 v3, v{regs[0]}, v{regs[1]}, v{regs[2]}")
    for n in range(3, 23, 2):
        a(f"v_max3_f32 v3, v3, v{regs[n]}, v{regs[n+1]}")
    a(f"""v_max_f32 v3, v3, v{regs[23]}
    v_mov_b32 v4, v3
    s_nop 1
    v_permlane32_swap_b32 v3, v4
    v_max_f32 v3, v3, v4""")
    for r in regs:
        a(f"v_sub_f32 v{r}, v{r}, v3")
    for r in regs:
        a(f"v_exp_f32 v{r}, v{r}")
    a("s_nop 0")
    for p in range(4):
        a(f"v_cvt_pk_bf16_f32 v{P2+p}, v{S0+8+2*p}, v{S0+9+2*p}")
    for p in range(8):
        a(f"v_cvt_pk_bf16_f32 v{P+p}, v{S1+2*p}, v{S1+2*p+1}")
    a(f"""s_nop 1
    v_mfma_f32_32x32x16_bf16 {vr(OA,16)}, {vr(LV0,4)}, {vr(P2,4)}, 0
    v_mfma_f32_32x32x16_bf16 {vr(OA,16)}, {vr(LV1,4)}, {vr(P,4)}, {vr(OA,16)}
    v_mfma_f32_32x32x16_bf16 {vr(OA,16)}, {vr(LV1+4,4)}, {vr(P+4,4)}, {vr(OA,16)}
    s_lshl_b32 s46, s35, 4
    s_add_u32 s46, s46, s32
    s_lshl_b32 s46, s46, 11
    s_add_u32 s46, s46, {O_OFF}
    s_nop 12""")
    finalize(OA, "s46")
    a.label("Lk2_e2")
    if STAMP: a("s_waitcnt vmcnt(0)")
    stamp(a, 4)
    stamp_flush(a, 5, 34)
    tl_end(a, 1, 34)
    wgt_end(a, 1, 34, 0)
    a(f"""s_barrier
    s_cmp_lg_u32 s70, 0
    s_cbranch_scc1 Lk2_end
    v_mov_b32 v6, {FLAG}
    ds_read_b128 v[8:11], v6
    s_waitcnt lgkmcnt(0)
    v_or3_b32 v8, v8, v9, v10
    v_or_b32 v8, v8, v11
    s_nop 0
    v_readfirstlane_b32 s62, v8
    s_nop 3
    s_cmp_eq_u32 s62, 0
    s_cbranch_scc1 Lk2_end""")
    a(f"""s_mov_b32 s70, 1
    v_mov_b32 v12, 0xff800000
    s_lshl_b32 s37, s36, 12
    v_add_u32 v13, s37, v1
    s_mov_b32 s63, 0""")
    a.label("Lk2_fb")
    a(f"""s_barrier
    s_lshl_b32 s43, s63, 13
    s_add_u32 s43, s43, s40
    s_mov_b32 m0, s41
    s_nop 0
    buffer_load_dwordx4 v1, s[16:19], s43 offen lds
    s_waitcnt vmcnt(0)
    s_barrier""")
    for u in range(2):
        a(f"""ds_read_b128 {vr(KF,4)}, v13 offset:{u*2048}
        ds_read_b128 {vr(KF+4,4)}, v13 offset:{u*2048+1024}
        s_waitcnt lgkmcnt(0)
        v_mfma_f32_32x32x16_bf16 {vr(S0,16)}, {vr(KF,4)}, {vr(QF,4)}, 0
        v_mfma_f32_32x32x16_bf16 {vr(S0,16)}, {vr(KF+4,4)}, {vr(QF+4,4)}, {vr(S0,16)}
        s_nop 15""")
        for n in range(0, 16, 2):
            a(f"v_max3_f32 v12, v12, v{S0+n}, v{S0+n+1}")
    a(f"""s_add_u32 s63, s63, 1
    s_cmp_lt_u32 s63, 16
    s_cbranch_scc1 Lk2_fb
    v_mov_b32 v4, v12
    s_nop 1
    v_permlane32_swap_b32 v12, v4
    v_max_f32 v3, v12, v4
    s_lshl_b32 s37, s34, 8
    s_add_u32 s37, s37, {EXCH}
    v_lshlrev_b32 v5, 2, v2
    v_add_u32 v6, s37, v5
    ds_write_b32 v6, v3
    s_xor_b32 s37, s34, 4
    s_lshl_b32 s37, s37, 8
    s_add_u32 s37, s37, {EXCH}
    v_add_u32 v6, s37, v5
    s_waitcnt lgkmcnt(0)
    s_barrier
    ds_read_b32 v4, v6
    s_waitcnt lgkmcnt(0)
    v_max_f32 v3, v3, v4""")
    for r in range(16):
        a(f"v_mov_b32 v{O+r}, 0")
    for c in range(PF): dma(c)
    a(f"""s_waitcnt vmcnt({(PF-1)*CT})
    s_barrier
    s_branch Lk2_setci""")
    a.label("Lk2_end")
    a("s_endpgm")
    return a.text(), 256 if STAMP else 176, EXCH + 2048
```

```python
from asmlib import *
import math, struct
from gen_common import *
from gen_k2 import Q

def gen_k3():
    a = Asm()
    R = 452 * 128
    EX = 2 * R
    OF = 16
    ACC = 144
    WF = 176
    NB = 4
    T = 208
    a("""s_cmp_ge_u32 s2, 224
    s_cbranch_scc1 Lk3_end
    s_load_dwordx2 s[4:5], s[0:1], 16""")
    stamp(a, 0)
    tl_start(a)
    wgt_start(a)
    a("""s_load_dwordx2 s[6:7], s[0:1], 40
    s_load_dwordx2 s[8:9], s[0:1], 56
    s_load_dwordx2 s[12:13], s[0:1], 72
    s_mov_b32 s3, 0x24924925
    s_lshr_b32 s30, s2, 3              ; j
    s_mul_hi_u32 s32, s30, s3          ; j/7
    s_mul_i32 s33, s32, 7
    s_sub_u32 s33, s30, s33            ; fb
    s_and_b32 s30, s2, 7
    s_lshl_b32 s30, s30, 2
    s_add_u32 s32, s32, s30
    v_lshrrev_b32 v3, 6, v0
    v_and_b32 v2, 63, v0
    v_readfirstlane_b32 s34, v3        ; w
    v_lshlrev_b32 v1, 4, v2
    s_waitcnt lgkmcnt(0)
    s_and_b32 s35, s34, 1
    s_lshr_b32 s36, s34, 1             ; type
    s_lshl_b32 s37, s32, 1
    s_add_u32 s37, s37, s35
    s_cmp_eq_u32 s36, 0
    s_cselect_b32 s4, s4, s6
    s_cselect_b32 s5, s5, s7""")
    srd(a, 16, 4, 448 * 896)
    srd(a, 20, 12, WS_USED)
    srd(a, 24, 8, 2048 * 896)
    a(f"""v_lshrrev_b32 v3, 3, v2
    v_mul_u32_u24 v4, 896, v3
    v_lshrrev_b32 v3, 2, v2
    v_and_b32 v3, 4, v3                ; ((l>>4)&1)<<2
    v_and_b32 v5, 7, v2
    v_xor_b32 v3, v3, v5
    v_lshlrev_b32 v3, 4, v3
    v_add_u32 v4, v4, v3
    s_mul_i32 s40, s36, {R}
    s_lshl_b32 s41, s35, 10
    s_add_u32 s40, s40, s41
    s_mul_i32 s41, s35, {8*896}
    s_lshl_b32 s42, s33, 7
    s_add_u32 s41, s41, s42
    v_lshlrev_b32 v5, 3, v2
    s_mul_i32 s42, s36, {R}
    s_add_u32 s42, s42, {448*128}
    v_add_u32 v5, s42, v5
    v_mov_b32 v6, 0
    v_mov_b32 v7, 0
    ds_write_b64 v5, v[6:7]
    v_and_b32 v3, 31, v2
    v_lshlrev_b32 v5, 2, v3
    s_lshl_b32 s42, s37, 7
    s_add_u32 s42, s42, {G_OFF}
    buffer_load_dword v14, v5, s[20:23], s42 offen
    s_lshl_b32 s46, s37, 15
    s_lshl_b32 s43, s36, 21
    s_add_u32 s46, s46, s43
    s_add_u32 s46, s46, {O_OFF}""")
    vq = Q()
    JB = [0, 8, 15, 22, 28]
    def issue(p):
        for j in range(JB[p], JB[p + 1]):
            a(f"""s_add_u32 m0, s40, {j*2048}
            s_add_u32 s42, s41, {j*16*896}
            buffer_load_dwordx4 v4, s[16:19], s42 offen lds""")
            vq.push(f"d{p}")
        for n in range(8 * p, 8 * p + 8):
            if n % 4 == 0 and n:
                a(f"s_add_u32 s46, s46, 4096")
            a(f"buffer_load_dwordx4 {vr(OF+4*n,4)}, v1, s[20:23], s46 offen offset:{(n%4)*1024}")
            vq.push(f"o{n}")
    issue(0); issue(1)
    a(f"""v_lshrrev_b32 v5, 5, v2
    v_lshlrev_b32 v6, 9, v5            ; hh*4*128
    v_and_b32 v5, 15, v2
    v_lshrrev_b32 v5, 2, v5            ; r
    v_lshlrev_b32 v7, 7, v5
    v_add_u32 v6, v6, v7
    v_lshrrev_b32 v5, 1, v5
    v_lshlrev_b32 v5, 6, v5            ; ((r>>1)&1)*64
    v_add_u32 v6, v6, v5
    v_lshrrev_b32 v5, 4, v2
    v_and_b32 v5, 1, v5
    v_lshlrev_b32 v5, 5, v5
    v_add_u32 v6, v6, v5
    v_and_b32 v5, 3, v2
    v_lshlrev_b32 v5, 3, v5
    v_add_u32 v6, v6, v5
    s_mul_i32 s42, s36, {R}
    v_add_u32 v6, s42, v6              ; ftl 0
    v_xor_b32 v7, 64, v6               ; ftl 1
    s_lshl_b32 s42, s37, 5
    v_add_u32 v3, s42, v3
    v_mul_u32_u24 v8, 896, v3
    v_lshrrev_b32 v5, 5, v2
    v_lshlrev_b32 v5, 4, v5
    v_add_u32 v8, v8, v5
    s_lshl_b32 s44, s33, 7
    s_lshl_b32 s42, s36, 6
    s_add_u32 s44, s44, s42
    s_lshl_b32 s42, s34, 11
    s_add_u32 s42, s42, {EX}
    v_add_u32 v9, s42, v1
    s_xor_b32 s42, s34, 2
    s_lshl_b32 s42, s42, 11
    s_add_u32 s42, s42, {EX}
    v_add_u32 v10, s42, v1
    s_waitcnt lgkmcnt(0)""")
    def rd(n):
        h, ks = n >> 1, n & 1
        b = WF + (n % NB) * 8
        off = (h * 28 + 16 * ks) * 128
        for f in range(2):
            a(f"ds_read_b64_tr_b16 {vr(b+4*f,2)}, v{6+f} offset:{off}")
            a(f"ds_read_b64_tr_b16 {vr(b+4*f+2,2)}, v{6+f} offset:{off+1024}")
    for n in range(32):
        if n % 8 == 0:
            a(f"s_waitcnt vmcnt({vq.need(f'd{n//8}')})")
            a("s_barrier")
            if n == 0: stamp(a, 1)
            for i in range(NB - 1): rd(n + i)
            if n // 8 + 2 < 4: issue(n // 8 + 2)
        lim = (n // 8) * 8 + 7
        if n + NB - 1 <= lim: rd(n + NB - 1)
        rem = min(NB - 1, lim - n)
        a(f"s_waitcnt vmcnt({vq.need(f'o{n}')}) lgkmcnt({4*rem})")
        b = WF + (n % NB) * 8
        for f in range(2):
            c = "0" if n == 0 else vr(ACC + 16 * f, 16)
            a(f"v_mfma_f32_32x32x16_bf16 {vr(ACC+16*f,16)}, {vr(b+4*f,4)}, {vr(OF+4*n,4)}, {c}")
    stamp(a, 2)
    a(f"""v_sub_f32 v15, 1.0, v14
    v_cvt_pk_bf16_f32 v15, v15, v15
    v_lshlrev_b32 v15, 16, v15
    s_mov_b32 s45, 0xffff0000
    s_cmp_eq_u32 s36, 0
    s_cbranch_scc1 Lk3_t0
    v_mov_b32 v13, v14
    v_mov_b32 v14, v15
    v_mov_b32 v15, v13""")
    a.label("Lk3_t0")
    a("s_nop 10")
    for f in range(2):
        for p in range(8):
            a(f"v_cvt_pk_bf16_f32 v{T+8*f+p}, v{ACC+16*f+2*p}, v{ACC+16*f+2*p+1}")
    a("""s_cmp_eq_u32 s36, 0
    s_cbranch_scc1 Lk3_t1""")
    for p in range(8):
        a(f"v_swap_b32 v{T+p}, v{T+8+p}")
    a.label("Lk3_t1")
    a(f"""ds_write_b128 v9, {vr(T+8,4)}
    ds_write_b128 v9, {vr(T+12,4)} offset:1024
    s_waitcnt lgkmcnt(0)
    s_barrier
    ds_read_b128 {vr(T+8,4)}, v10
    ds_read_b128 {vr(T+12,4)}, v10 offset:1024""")
    A, B = ACC, ACC + 16
    for p in range(8):
        a(f"v_lshlrev_b32 v{A+2*p}, 16, v{T+p}")
        a(f"v_and_b32 v{A+2*p+1}, s45, v{T+p}")
    for r in range(16):
        a(f"v_mul_f32 v{A+r}, v14, v{A+r}")
    for p in range(8):
        a(f"v_cvt_pk_bf16_f32 v{T+p}, v{A+2*p}, v{A+2*p+1}")
    for p in range(8):
        a(f"v_lshlrev_b32 v{A+2*p}, 16, v{T+p}")
        a(f"v_and_b32 v{A+2*p+1}, s45, v{T+p}")
    a("s_waitcnt lgkmcnt(0)")
    for p in range(8):
        a(f"v_lshlrev_b32 v{B+2*p}, 16, v{T+8+p}")
        a(f"v_and_b32 v{B+2*p+1}, s45, v{T+8+p}")
    for r in range(16):
        a(f"v_mul_f32 v{B+r}, v15, v{B+r}")
    for p in range(8):
        a(f"v_cvt_pk_bf16_f32 v{T+8+p}, v{B+2*p}, v{B+2*p+1}")
    for p in range(8):
        a(f"v_lshlrev_b32 v{B+2*p}, 16, v{T+8+p}")
        a(f"v_and_b32 v{B+2*p+1}, s45, v{T+8+p}")
    for r in range(16):
        a(f"v_add_f32 v{A+r}, v{A+r}, v{B+r}")
    for p in range(8):
        a(f"v_cvt_pk_bf16_f32 v{T+p}, v{A+2*p}, v{A+2*p+1}")
    a("s_nop 1")
    for g in (0, 2):
        a(f"v_permlane32_swap_b32 v{T+2*g}, v{T+2*g+2}")
        a(f"v_permlane32_swap_b32 v{T+2*g+1}, v{T+2*g+3}")
    for g in (0, 2):
        a(f"buffer_store_dwordx4 {vr(T+2*g,4)}, v8, s[24:27], s44 offen offset:{g*16}{SF3}")
    if STAMP: a("s_waitcnt vmcnt(0)")
    stamp(a, 3)
    stamp_flush(a, 4, 34)
    tl_end(a, 2, 34)
    wgt_end(a, 2, 34, 0)
    a.label("Lk3_end")
    a("s_endpgm")
    return a.text(), 256 if STAMP else 240, EX + 8192
```

```python
from asmlib import *
import math, struct
from gen_common import *
from gen_k2 import Q

def gen_k3():
    a = Asm()
    R = 452 * 128
    EX = 2 * R
    OF = 16
    ACC = 144
    WF = 176
    NB = 4
    T = 208
    a("""s_cmp_ge_u32 s2, 224
    s_cbranch_scc1 Lk3_end
    s_load_dwordx2 s[4:5], s[0:1], 16""")
    stamp(a, 0)
    tl_start(a)
    wgt_start(a)
    a("""s_load_dwordx2 s[6:7], s[0:1], 40
    s_load_dwordx2 s[8:9], s[0:1], 56
    s_load_dwordx2 s[12:13], s[0:1], 72
    s_mov_b32 s3, 0x24924925
    s_lshr_b32 s30, s2, 3              ; j
    s_mul_hi_u32 s32, s30, s3          ; j/7
    s_mul_i32 s33, s32, 7
    s_sub_u32 s33, s30, s33            ; fb
    s_and_b32 s30, s2, 7
    s_lshl_b32 s30, s30, 2
    s_add_u32 s32, s32, s30
    v_lshrrev_b32 v3, 6, v0
    v_and_b32 v2, 63, v0
    v_readfirstlane_b32 s34, v3        ; w
    v_lshlrev_b32 v1, 4, v2
    s_waitcnt lgkmcnt(0)
    s_and_b32 s35, s34, 1
    s_lshr_b32 s36, s34, 1             ; type
    s_lshl_b32 s37, s32, 1
    s_add_u32 s37, s37, s35
    s_cmp_eq_u32 s36, 0
    s_cselect_b32 s4, s4, s6
    s_cselect_b32 s5, s5, s7""")
    srd(a, 16, 4, 448 * 896)
    srd(a, 20, 12, WS_USED)
    srd(a, 24, 8, 2048 * 896)
    a(f"""v_lshrrev_b32 v3, 3, v2
    v_mul_u32_u24 v4, 896, v3
    v_lshrrev_b32 v3, 2, v2
    v_and_b32 v3, 4, v3                ; ((l>>4)&1)<<2
    v_and_b32 v5, 7, v2
    v_xor_b32 v3, v3, v5
    v_lshlrev_b32 v3, 4, v3
    v_add_u32 v4, v4, v3
    s_mul_i32 s40, s36, {R}
    s_lshl_b32 s41, s35, 10
    s_add_u32 s40, s40, s41
    s_mul_i32 s41, s35, {8*896}
    s_lshl_b32 s42, s33, 7
    s_add_u32 s41, s41, s42
    v_lshlrev_b32 v5, 3, v2
    s_mul_i32 s42, s36, {R}
    s_add_u32 s42, s42, {448*128}
    v_add_u32 v5, s42, v5
    v_mov_b32 v6, 0
    v_mov_b32 v7, 0
    ds_write_b64 v5, v[6:7]
    v_and_b32 v3, 31, v2
    v_lshlrev_b32 v5, 2, v3
    s_lshl_b32 s42, s37, 7
    s_add_u32 s42, s42, {G_OFF}
    buffer_load_dword v14, v5, s[20:23], s42 offen
    s_lshl_b32 s46, s37, 15
    s_lshl_b32 s43, s36, 21
    s_add_u32 s46, s46, s43
    s_add_u32 s46, s46, {O_OFF}""")
    vq = Q()
    JB = [0, 8, 15, 22, 28]
    def issue_items(p):
        items = []
        for j in range(JB[p], JB[p + 1]):
            items.append((f"""s_add_u32 m0, s40, {j*2048}
            s_add_u32 s42, s41, {j*16*896}
            buffer_load_dwordx4 v4, s[16:19], s42 offen lds""", f"d{p}"))
        for n in range(8 * p, 8 * p + 8):
            pre = "s_add_u32 s46, s46, 4096\n" if (n % 4 == 0 and n) else ""
            items.append((pre + f"buffer_load_dwordx4 {vr(OF+4*n,4)}, v1, s[20:23], s46 offen offset:{(n%4)*1024}", f"o{n}"))
        return items
    def issue(p):
        for txt, tag in issue_items(p):
            a(txt); vq.push(tag)
    issue(0); issue(1)
    a(f"""v_lshrrev_b32 v5, 5, v2
    v_lshlrev_b32 v6, 9, v5            ; hh*4*128
    v_and_b32 v5, 15, v2
    v_lshrrev_b32 v5, 2, v5            ; r
    v_lshlrev_b32 v7, 7, v5
    v_add_u32 v6, v6, v7
    v_lshrrev_b32 v5, 1, v5
    v_lshlrev_b32 v5, 6, v5            ; ((r>>1)&1)*64
    v_add_u32 v6, v6, v5
    v_lshrrev_b32 v5, 4, v2
    v_and_b32 v5, 1, v5
    v_lshlrev_b32 v5, 5, v5
    v_add_u32 v6, v6, v5
    v_and_b32 v5, 3, v2
    v_lshlrev_b32 v5, 3, v5
    v_add_u32 v6, v6, v5
    s_mul_i32 s42, s36, {R}
    v_add_u32 v6, s42, v6              ; ftl 0
    v_xor_b32 v7, 64, v6               ; ftl 1
    s_lshl_b32 s42, s37, 5
    v_add_u32 v3, s42, v3
    v_mul_u32_u24 v8, 896, v3
    v_lshrrev_b32 v5, 5, v2
    v_lshlrev_b32 v5, 4, v5
    v_add_u32 v8, v8, v5
    s_lshl_b32 s44, s33, 7
    s_lshl_b32 s42, s36, 6
    s_add_u32 s44, s44, s42
    s_lshl_b32 s42, s34, 11
    s_add_u32 s42, s42, {EX}
    v_add_u32 v9, s42, v1
    s_xor_b32 s42, s34, 2
    s_lshl_b32 s42, s42, 11
    s_add_u32 s42, s42, {EX}
    v_add_u32 v10, s42, v1
    s_waitcnt lgkmcnt(0)""")
    def rd(n):
        h, ks = n >> 1, n & 1
        b = WF + (n % NB) * 8
        off = (h * 28 + 16 * ks) * 128
        for f in range(2):
            a(f"ds_read_b64_tr_b16 {vr(b+4*f,2)}, v{6+f} offset:{off}")
            a(f"ds_read_b64_tr_b16 {vr(b+4*f+2,2)}, v{6+f} offset:{off+1024}")
    for n in range(32):
        if n % 8 == 0:
            a(f"s_waitcnt vmcnt({vq.need(f'd{n//8}')})")
            a("s_barrier")
            if n == 0: stamp(a, 1)
            for i in range(NB - 1): rd(n + i)
            pend = issue_items(n // 8 + 2) if n // 8 + 2 < 4 else []
        lim = (n // 8) * 8 + 7
        if n + NB - 1 <= lim: rd(n + NB - 1)
        rem = min(NB - 1, lim - n)
        a(f"s_waitcnt vmcnt({vq.need(f'o{n}')}) lgkmcnt({4*rem})")
        b = WF + (n % NB) * 8
        for f in range(2):
            c = "0" if n == 0 else vr(ACC + 16 * f, 16)
            a(f"v_mfma_f32_32x32x16_bf16 {vr(ACC+16*f,16)}, {vr(b+4*f,4)}, {vr(OF+4*n,4)}, {c}")
        for _ in range(2):
            if pend:
                txt, tag = pend.pop(0)
                a(txt); vq.push(tag)
    stamp(a, 2)
    a(f"""v_sub_f32 v15, 1.0, v14
    v_cvt_pk_bf16_f32 v15, v15, v15
    v_lshlrev_b32 v15, 16, v15
    s_mov_b32 s45, 0xffff0000
    s_cmp_eq_u32 s36, 0
    s_cbranch_scc1 Lk3_t0
    v_mov_b32 v13, v14
    v_mov_b32 v14, v15
    v_mov_b32 v15, v13""")
    a.label("Lk3_t0")
    a("s_nop 10")
    for f in range(2):
        for p in range(8):
            a(f"v_cvt_pk_bf16_f32 v{T+8*f+p}, v{ACC+16*f+2*p}, v{ACC+16*f+2*p+1}")
    a("""s_cmp_eq_u32 s36, 0
    s_cbranch_scc1 Lk3_t1""")
    for p in range(8):
        a(f"v_swap_b32 v{T+p}, v{T+8+p}")
    a.label("Lk3_t1")
    a(f"""ds_write_b128 v9, {vr(T+8,4)}
    ds_write_b128 v9, {vr(T+12,4)} offset:1024
    s_waitcnt lgkmcnt(0)
    s_barrier
    ds_read_b128 {vr(T+8,4)}, v10
    ds_read_b128 {vr(T+12,4)}, v10 offset:1024""")
    A, B = ACC, ACC + 16
    for p in range(8):
        a(f"v_lshlrev_b32 v{A+2*p}, 16, v{T+p}")
        a(f"v_and_b32 v{A+2*p+1}, s45, v{T+p}")
    for r in range(16):
        a(f"v_mul_f32 v{A+r}, v14, v{A+r}")
    for p in range(8):
        a(f"v_cvt_pk_bf16_f32 v{T+p}, v{A+2*p}, v{A+2*p+1}")
    for p in range(8):
        a(f"v_lshlrev_b32 v{A+2*p}, 16, v{T+p}")
        a(f"v_and_b32 v{A+2*p+1}, s45, v{T+p}")
    a("s_waitcnt lgkmcnt(0)")
    for p in range(8):
        a(f"v_lshlrev_b32 v{B+2*p}, 16, v{T+8+p}")
        a(f"v_and_b32 v{B+2*p+1}, s45, v{T+8+p}")
    for r in range(16):
        a(f"v_mul_f32 v{B+r}, v15, v{B+r}")
    for p in range(8):
        a(f"v_cvt_pk_bf16_f32 v{T+8+p}, v{B+2*p}, v{B+2*p+1}")
    for p in range(8):
        a(f"v_lshlrev_b32 v{B+2*p}, 16, v{T+8+p}")
        a(f"v_and_b32 v{B+2*p+1}, s45, v{T+8+p}")
    for r in range(16):
        a(f"v_add_f32 v{A+r}, v{A+r}, v{B+r}")
    for p in range(8):
        a(f"v_cvt_pk_bf16_f32 v{T+p}, v{A+2*p}, v{A+2*p+1}")
    a("s_nop 1")
    for g in (0, 2):
        a(f"v_permlane32_swap_b32 v{T+2*g}, v{T+2*g+2}")
        a(f"v_permlane32_swap_b32 v{T+2*g+1}, v{T+2*g+3}")
    for g in (0, 2):
        a(f"buffer_store_dwordx4 {vr(T+2*g,4)}, v8, s[24:27], s44 offen offset:{g*16}{SF3}")
    if STAMP: a("s_waitcnt vmcnt(0)")
    stamp(a, 3)
    stamp_flush(a, 4, 34)
    tl_end(a, 2, 34)
    wgt_end(a, 2, 34, 0)
    a.label("Lk3_end")
    a("s_endpgm")
    return a.text(), 256 if STAMP else 240, EX + 8192
```

```python
from asmlib import *
import math, struct, os
from gen_common import *

def gen_k1():
    a = Asm()
    ACC = 16
    WF = 64
    XFR = 88
    PK0 = 96
    XA = 120
    WA = 124
    GF = 128
    WD = 136
    XS = 16384; WB = 3 * XS; WS = 64 * 448
    GA = WB + 3 * WS
    a("""s_cmp_ge_u32 s2, 256
    s_cbranch_scc1 Lk1_end
    s_load_dwordx2 s[4:5], s[0:1], 0""")
    stamp(a, 0)
    tl_start(a)
    wgt_start(a)
    a("""s_load_dwordx2 s[6:7], s[0:1], 8
    s_load_dwordx2 s[8:9], s[0:1], 32
    s_load_dwordx2 s[10:11], s[0:1], 48
    s_load_dwordx2 s[12:13], s[0:1], 72
    s_and_b32 s32, s2, 7
    s_lshr_b32 s33, s2, 3
    s_and_b32 s34, s32, 1
    s_lshl_b32 s34, s34, 3
    s_and_b32 s36, s33, 7
    s_add_u32 s34, s34, s36            ; rb
    s_lshr_b32 s35, s32, 1
    s_lshl_b32 s35, s35, 2
    s_lshr_b32 s36, s33, 3
    s_add_u32 s35, s35, s36            ; G
    s_lshr_b32 s36, s35, 3             ; type
    s_and_b32 s37, s35, 7              ; g
    v_lshrrev_b32 v1, 6, v0
    v_and_b32 v2, 63, v0
    v_readfirstlane_b32 s38, v1        ; w
    s_waitcnt lgkmcnt(0)""")
    srd(a, 16, 4, 2048 * 896)
    a("""s_cmp_eq_u32 s36, 0
    s_cselect_b32 s6, s6, s8
    s_cselect_b32 s7, s7, s9""")
    srd(a, 20, 6, 448 * 2688)
    srd(a, 24, 12, WS_USED)
    srd(a, 28, 10, 896)
    a(f"""s_and_b32 s56, s38, 3              ; rt
    s_lshr_b32 s57, s38, 2             ; half
    s_lshl_b32 s39, s34, 2
    s_add_u32 s39, s39, s56            ; stile
    s_mul_i32 s58, s37, 6
    s_mul_i32 s59, s57, 3
    s_add_u32 s58, s58, s59            ; slot0
    s_lshl_b32 s40, s34, 7
    s_lshl_b32 s43, s38, 4
    s_add_u32 s40, s40, s43
    s_mul_i32 s40, s40, 896
    s_lshl_b32 s41, s38, 11
    s_mul_i32 s42, s37, 336
    s_lshl_b32 s45, s38, 10
    s_add_u32 s45, s45, {WB}
    v_lshrrev_b32 v3, 3, v2
    v_mul_u32_u24 v4, 896, v3
    v_and_b32 v3, 7, v2
    v_lshrrev_b32 v6, 4, v2
    v_xor_b32 v3, v3, v6
    v_lshlrev_b32 v6, 4, v3
    v_xor_b32 v7, 64, v6
    v_add_u32 v5, v4, v7
    v_add_u32 v4, v4, v6
    ; W DMA voffsets: instr i = w + 8q ; n = 64 i + l ; row = n/28 ; piece = n%28
    s_lshl_b32 s43, s38, 6
    v_add_u32 v3, s43, v2
    s_mov_b32 s44, 0x92492493""")
    for q in range(4):
        a(f"""v_add_u32 v6, {512*q}, v3
        v_lshrrev_b32 v7, 2, v6
        v_mul_hi_u32 v7, v7, s44
        v_lshrrev_b32 v7, 2, v7            ; row = n/28
        v_mul_u32_u24 v8, 28, v7
        v_sub_u32 v8, v6, v8               ; piece
        v_mul_u32_u24 v7, 2688, v7
        v_lshl_add_u32 v7, v8, 4, v7
        v_cmp_gt_u32 vcc, 22, v8
        v_mov_b32 v9, 0x7ff00000
        s_nop 0
        v_cndmask_b32 v{WD+q}, v9, v7, vcc""")
    a(f"""; gate: G==0, half==0 waves
    s_add_u32 s43, s35, s57
    s_cmp_eq_u32 s43, 0
    s_cselect_b32 s53, 1, 0
    s_mov_b32 s54, 0x10000000
    s_mov_b32 s55, 0x10000000
    v_lshrrev_b32 v3, 5, v2
    v_lshlrev_b32 v13, 4, v3
    v_add_u32 v13, {GA}, v13
    v_lshlrev_b32 v12, 4, v2
    s_cmp_eq_u32 s53, 1
    s_cbranch_scc0 Lk1_nog0
    s_mov_b32 m0, {GA}
    s_nop 0
    buffer_load_dwordx4 v12, s[28:31], 0 offen lds""")
    a.label("Lk1_nog0")
    uid = [0]
    def dma_part(kc, part):
        st = kc % 3
        if part == 0:
            for e in range(2):
                a(f"""s_add_u32 m0, s41, {st*XS + e*1024}
                s_add_u32 s43, s40, {e*8*896 + kc*128}
                buffer_load_dwordx4 v{4+e}, s[16:19], s43 offen lds""")
        elif part < 3:
            qs = [0] if part == 1 else [1, 2]
            a(f"s_add_u32 s43, s42, {kc*64*2688}")
            for q in qs:
                a(f"""s_add_u32 m0, s45, {st*WS + q*8192}
                s_nop 0
                buffer_load_dwordx4 v{WD+q}, s[20:23], s43 offen lds""")
        else:
            uid[0] += 1
            a(f"""s_cmp_lt_u32 s38, 4
            s_cbranch_scc0 Lk1_d{uid[0]}
            s_add_u32 s43, s42, {kc*64*2688}
            s_add_u32 m0, s45, {st*WS + 3*8192}
            s_nop 0
            buffer_load_dwordx4 v{WD+3}, s[20:23], s43 offen lds""")
            a.label(f"Lk1_d{uid[0]}")
    def dma(kc):
        for p in range(4): dma_part(kc, p)
    dma(0); dma(1)
    a(f"""v_and_b32 v3, 31, v2
    v_lshrrev_b32 v8, 1, v3
    v_and_b32 v8, 7, v8                ; g(row)
    v_lshrrev_b32 v9, 5, v2            ; hh
    v_xor_b32 v8, v8, v9
    v_lshlrev_b32 v8, 4, v8
    v_lshlrev_b32 v3, 7, v3
    s_lshl_b32 s43, s56, 12
    v_add3_u32 v{XA}, v3, v8, s43
    v_xor_b32 v{XA+1}, 32, v{XA}
    v_xor_b32 v{XA+2}, 64, v{XA}
    v_xor_b32 v{XA+3}, 96, v{XA}
    v_lshrrev_b32 v3, 5, v2
    v_lshlrev_b32 v3, 3, v3            ; hh*8
    v_and_b32 v8, 15, v2
    v_lshrrev_b32 v8, 2, v8            ; r
    v_add_u32 v3, v3, v8
    v_mul_u32_u24 v11, 448, v3
    v_lshrrev_b32 v3, 4, v2
    v_and_b32 v3, 1, v3
    v_lshlrev_b32 v3, 5, v3            ; colhalf*32
    v_add_u32 v11, v11, v3
    v_and_b32 v3, 3, v2
    v_lshlrev_b32 v3, 3, v3
    v_add_u32 v11, v11, v3
    s_mul_i32 s43, s57, 168
    s_add_u32 s43, s43, {WB}
    v_add_u32 v{WA}, s43, v11
    v_add_u32 v{WA+1}, {WS}, v{WA}
    v_add_u32 v{WA+2}, {2*WS}, v{WA}
    s_mov_b32 s48, 0xffffffff
    s_mov_b32 s49, 0
    s_mov_b32 s50, 0x0fffffff
    s_mov_b32 s51, 0x0fffffff          ; (l&31)<28 mask
    v_and_b32 v3, 31, v2
    v_mov_b32 v9, 0x3f803f80
    v_cmp_eq_u32 vcc, 28, v3
    s_nop 1
    v_cndmask_b32 v9, 0, v9, vcc
    s_cmp_ge_u32 s58, 32
    s_cbranch_scc1 Lk1_var2
    s_cmp_eq_u32 s58, 30
    s_cbranch_scc1 Lk1_var1""")
    for var, pat in enumerate([(0, 0, 0), (0, 0, 1), (1, 1, 1)]):
        if var: a.label(f"Lk1_var{var}")
        def rd(ks):
            kc, m = ks >> 2, ks & 3
            st = kc % 3
            b = WF + (ks % 2) * 12
            if var == 0:
                a(f"""s_cmp_eq_u32 s53, 1
                s_cbranch_scc0 Lk1_gr{ks}
                ds_read_b128 {vr(GF+4*(ks%2),4)}, v13 offset:{ks*32}""")
                a.label(f"Lk1_gr{ks}")
            a(f"ds_read_b128 {vr(XFR+4*(ks%2),4)}, v{XA+m} offset:{st*XS}")
            for j in range(3):
                off = m * 16 * 448 + j * 56
                a(f"ds_read_b64_tr_b16 {vr(b+4*j,2)}, v{WA+st} offset:{off}")
                a(f"ds_read_b64_tr_b16 {vr(b+4*j+2,2)}, v{WA+st} offset:{off+1792}")
        a("s_waitcnt vmcnt(5)")
        a("s_barrier")
        if var == 0: stamp(a, 1)
        rd(0)
        for kc in range(7):
            for m in range(4):
                ks = 4 * kc + m
                if m < 3:
                    rd(ks + 1)
                    a("s_waitcnt lgkmcnt(7)")
                else:
                    a("s_waitcnt lgkmcnt(0)")
                    if kc + 1 < 7:
                        a(f"s_waitcnt vmcnt({5 if kc + 2 < 7 else 0})")
                        a("s_barrier")
                        rd(ks + 1)
                b = WF + (ks % 2) * 12
                x = vr(XFR + 4 * (ks % 2), 4)
                if var == 0:
                    a(f"""s_cmp_eq_u32 s53, 1
                    s_cbranch_scc0 Lk1_ng{ks}""")
                    for q in range(4):
                        a(f"v_cndmask_b32 v{b+q}, v{b+q}, v{GF+4*(ks%2)+q}, s[54:55]")
                    a("s_nop 1")
                    a.label(f"Lk1_ng{ks}")
                for j in range(3):
                    c = "0" if ks == 0 else vr(ACC + 16 * j, 16)
                    if pat[j] == 0:
                        a(f"v_mfma_f32_32x32x16_bf16 {vr(ACC+16*j,16)}, {vr(b+4*j,4)}, {x}, {c}")
                    else:
                        a(f"v_mfma_f32_32x32x16_bf16 {vr(ACC+16*j,16)}, {x}, {vr(b+4*j,4)}, {c}")
                if kc + 2 < 7: dma_part(kc + 2, m)
        if var == 0: stamp(a, 2)
        a("s_nop 15")
        if var == 0:
            a(f"""s_cmp_eq_u32 s53, 1
            s_cbranch_scc0 Lk1_nogate2
            v_cvt_pk_bf16_f32 v10, v{ACC+12}, v{ACC+12}
            v_lshlrev_b32 v10, 16, v10
            v_mul_f32 v10, {f32bits(-math.log2(math.e))}, v10
            v_exp_f32 v10, v10
            s_nop 0
            v_add_f32 v10, 1.0, v10
            v_rcp_f32 v10, v10
            s_nop 0
            v_cvt_pk_bf16_f32 v10, v10, v10
            v_lshlrev_b32 v10, 16, v10
            v_and_b32 v3, 31, v2
            v_lshlrev_b32 v3, 2, v3
            s_lshl_b32 s44, s39, 7
            s_add_u32 s44, s44, {G_OFF}
            s_mov_b32 exec_lo, 0
            buffer_store_dword v10, v3, s[24:27], s44 offen
            s_mov_b32 exec_lo, -1""")
            a.label("Lk1_nogate2")
        PK = PK0
        for j in range(3):
            A = ACC + 16 * j
            a(f"""s_add_u32 s43, s58, {j}
            s_lshr_b32 s44, s43, 4
            s_and_b32 s43, s43, 15
            s_lshl_b32 s46, s36, 4
            s_add_u32 s43, s43, s46
            s_lshl_b32 s43, s43, 6
            s_add_u32 s43, s43, s39
            s_lshl_b32 s43, s43, 11
            s_lshl_b32 s46, s44, 22
            s_add_u32 s43, s43, s46""")
            if pat[j] == 0:
                a(f"""s_cmp_eq_u32 s44, 0
                s_cselect_b32 s52, {f32bits(CSCALE)}, 1.0""")
                for r in range(16):
                    a(f"v_mul_f32 v{A+r}, s52, v{A+r}")
            for p in range(8):
                a(f"v_cvt_pk_bf16_f32 v{PK+p}, v{A+2*p}, v{A+2*p+1}")
            if pat[j] == 0:
                a(f"v_cndmask_b32 v{PK+6}, 0, v{PK+6}, s[48:49]")
                a(f"v_cndmask_b32 v{PK+7}, 0, v{PK+7}, s[48:49]")
            else:
                for p in range(8):
                    a(f"v_cndmask_b32 v{PK+p}, v9, v{PK+p}, s[50:51]")
            a(f"buffer_store_dwordx4 {vr(PK,4)}, v12, s[24:27], s43 offen{SF}")
            a(f"buffer_store_dwordx4 {vr(PK+4,4)}, v12, s[24:27], s43 offen offset:1024{SF}")
            PK += 8
        if var < 2: a("s_branch Lk1_fin")
    a.label("Lk1_fin")
    if STAMP:
        a("s_waitcnt vmcnt(0)")
    stamp(a, 3)
    stamp_flush(a, 4, 38)
    tl_end(a, 0, 38)
    wgt_end(a, 0, 38, 0)
    a.label("Lk1_end")
    a("s_endpgm")
    return a.text(), 256 if STAMP else 144, GA + 1024
```

```python
from asmlib import *
import math, struct, os
from gen_common import *

class Q:
    def __init__(self): self.q = []
    def push(self, tag): self.q.append(tag)
    def need(self, tag):
        last = -1
        for i, t in enumerate(self.q):
            if t == tag: last = i
        if last < 0: return None
        n = len(self.q) - 1 - last
        self.q = self.q[last + 1:]
        return n

def gen_k2(fused=False):
    a = Asm()
    ENDL = 'Lk2_fin' if fused else 'Lk2_end'
    QF, KF, VF, S0, S1, O, CI = 16, 24, 32, 48, 64, 80, 96
    PB = [40, 112]
    VBK, VBV = 120, 121
    LQ, LK0, LK1, LV0, LV1 = 124, 132, 140, 148, 152
    T = 160
    CT = int(os.environ.get('CT', '4'))
    CB = CT * 4096
    NS = 5 if CT == 2 else 4
    NCH = 32 // CT
    PF = 3
    SYNC = 0 if CT == 2 else CT - 2
    VREG = NS * CB
    COMB = 2 * VREG; FLAG = COMB + 16384; EXCH = FLAG + 256
    S = [S0, S1]
    P = PB[0]
    a("""s_cmp_ge_u32 s2, 256
    s_cbranch_scc1 Lk2_end
    s_load_dwordx2 s[12:13], s[0:1], 72
    s_load_dwordx2 s[4:5], s[0:1], 16
    s_load_dwordx2 s[6:7], s[0:1], 40""")
    stamp(a, 0)
    tl_start(a)
    wgt_start(a)
    a(f"""s_and_b32 s32, s2, 7
    s_lshr_b32 s33, s2, 3
    s_lshl_b32 s32, s32, 1
    s_and_b32 s37, s33, 1
    s_add_u32 s32, s32, s37            ; h
    s_lshr_b32 s33, s33, 1             ; qb
    v_lshrrev_b32 v3, 6, v0
    v_and_b32 v2, 63, v0
    v_readfirstlane_b32 s34, v3        ; w
    v_lshlrev_b32 v1, 4, v2            ; lane*16
    s_mov_b32 s70, 0
    s_and_b32 s37, s34, 3
    s_lshl_b32 s35, s33, 2
    s_add_u32 s35, s35, s37            ; qt
    s_lshr_b32 s36, s34, 2             ; ksp
    s_mul_i32 s37, s36, {CT*2048}
    v_add_u32 v{VBK}, s37, v1
    v_add_u32 v{VBV}, {VREG}, v{VBK}
    s_waitcnt lgkmcnt(0)""")
    srd(a, 16, 12, WS_USED)
    a("""s_lshl_b32 s64, s2, 3
    s_add_u32 s64, s64, s34
    s_cmp_lt_u32 s64, 392
    s_cselect_b32 s4, s4, s6
    s_cselect_b32 s5, s5, s7
    s_sub_u32 s65, s64, 392
    s_cselect_b32 s64, s64, s65
    s_lshl_b32 s64, s64, 10""")
    srd(a, 20, 4, 448 * 896)
    a(f"""s_add_u32 s37, s32, 16
    s_lshl_b32 s38, s37, 6
    s_add_u32 s38, s38, s35
    s_lshl_b32 s38, s38, 11
    buffer_load_dwordx4 {vr(QF,4)}, v1, s[16:19], s38 offen
    buffer_load_dwordx4 {vr(QF+4,4)}, v1, s[16:19], s38 offen offset:1024
    s_lshl_b32 s40, s37, 17            ; (16+h)*131072
    s_lshl_b32 s41, s34, 10            ; w*1024
    s_add_u32 s40, s40, s41
    s_add_u32 s42, s40, {V_OFF}        ; V base
    s_add_u32 s40, s40, {K_OFF}        ; K base
    s_mov_b32 s48, 0xffffffff
    s_mov_b32 s49, 0""")
    def local_loads():
        a(f"""s_cmp_eq_u32 s36, 1
        s_cbranch_scc0 Lk2_noll
        s_lshl_b32 s38, s32, 6
        s_add_u32 s39, s38, s35            ; h*64+qt
        s_sub_u32 s45, s35, 1
        s_max_i32 s45, s45, 0
        s_add_u32 s45, s38, s45            ; h*64+prev
        s_lshl_b32 s39, s39, 11
        s_lshl_b32 s45, s45, 11
        buffer_load_dwordx4 {vr(LQ,4)}, v1, s[16:19], s39 offen
        buffer_load_dwordx4 {vr(LQ+4,4)}, v1, s[16:19], s39 offen offset:1024
        s_add_u32 s46, s45, {K_OFF}
        buffer_load_dwordx4 {vr(LK0,4)}, v1, s[16:19], s46 offen
        buffer_load_dwordx4 {vr(LK0+4,4)}, v1, s[16:19], s46 offen offset:1024
        s_add_u32 s46, s39, {K_OFF}
        buffer_load_dwordx4 {vr(LK1,4)}, v1, s[16:19], s46 offen
        buffer_load_dwordx4 {vr(LK1+4,4)}, v1, s[16:19], s46 offen offset:1024
        s_add_u32 s46, s45, {V_OFF}
        buffer_load_dwordx4 {vr(LV0,4)}, v1, s[16:19], s46 offen offset:1024
        s_add_u32 s46, s39, {V_OFF}
        buffer_load_dwordx4 {vr(LV1,4)}, v1, s[16:19], s46 offen
        buffer_load_dwordx4 {vr(LV1+4,4)}, v1, s[16:19], s46 offen offset:1024""")
        a.label("Lk2_noll")
    def dma(c, us=None):
        slot = c % NS
        for u in (range(CT // 2) if us is None else us):
            a(f"""s_add_u32 s43, s40, {c*CB + u*8192}
            s_add_u32 m0, s41, {slot*CB + u*8192}
            s_add_u32 s44, s42, {c*CB + u*8192}
            buffer_load_dwordx4 v1, s[16:19], s43 offen lds
            s_add_u32 m0, s41, {VREG+slot*CB + u*8192}
            s_nop 0
            buffer_load_dwordx4 v1, s[16:19], s44 offen lds""")
    for c in range(PF - 1): dma(c)

    def finalize(Oreg, soff, check=False):
        a(f"""v_mov_b32 v3, v{Oreg+12}
        v_mov_b32 v4, v{Oreg+12}
        s_nop 1
        v_permlane32_swap_b32 v3, v4
        v_rcp_f32 v5, v4""")
        if check:
            a(f"""v_mov_b32 v6, 0.5
            v_mov_b32 v7, {f32bits(2.0**40)}
            v_cmp_nge_f32 vcc, v4, v6
            v_cmp_nle_f32 s[60:61], v4, v7
            s_or_b64 s[60:61], s[60:61], vcc""")
        else:
            a("s_nop 0")
        for r in range(16):
            a(f"v_mul_f32 v{Oreg+r}, v5, v{Oreg+r}")
        for p in range(8):
            a(f"v_cvt_pk_bf16_f32 v{P+p}, v{Oreg+2*p}, v{Oreg+2*p+1}")
        a(f"""v_cndmask_b32 v{P+6}, 0, v{P+6}, s[48:49]
        v_cndmask_b32 v{P+7}, 0, v{P+7}, s[48:49]
        buffer_store_dwordx4 {vr(P,4)}, v1, s[16:19], {soff} offen{SF}
        buffer_store_dwordx4 {vr(P+4,4)}, v1, s[16:19], {soff} offen offset:1024{SF}""")

    a(f"""s_waitcnt vmcnt({(PF-2)*CT})
    s_barrier""")
    stamp(a, 1)
    a(f"""ds_read_b128 {vr(KF,4)}, v1
    ds_read_b128 {vr(KF+4,4)}, v1 offset:1024
    s_waitcnt lgkmcnt(0)
    v_mfma_f32_32x32x16_bf16 {vr(S0,16)}, {vr(KF,4)}, {vr(QF,4)}, 0
    v_mfma_f32_32x32x16_bf16 {vr(S0,16)}, {vr(KF+4,4)}, {vr(QF+4,4)}, {vr(S0,16)}""")
    dma(PF - 1)
    for r in range(16):
        a(f"v_mov_b32 v{O+r}, 0")
    a(f"v_max3_f32 v3, v{S0}, v{S0+1}, v{S0+2}")
    for n in range(3, 15, 2):
        a(f"v_max3_f32 v3, v3, v{S0+n}, v{S0+n+1}")
    a(f"""v_max_f32 v3, v3, v{S0+15}
    v_mov_b32 v4, v3
    s_nop 1
    v_permlane32_swap_b32 v3, v4
    v_max_f32 v3, v3, v4""")
    a.label("Lk2_setci")
    stamp(a, 2)
    for r in range(16):
        a(f"v_sub_f32 v{CI+r}, 0, v3")
    lq = Q(); vq = Q()
    for c in range(1, PF):
        for _ in range(CT): vq.push(f"c{c}")
    def off(i):
        return ((i // CT) % NS) * CB + (i % CT) * 2048
    def kread(i):
        a(f"ds_read_b128 {vr(KF,4)}, v{VBK} offset:{off(i)}")
        a(f"ds_read_b128 {vr(KF+4,4)}, v{VBK} offset:{off(i)+1024}")
        lq.push(f"k{i}"); lq.push(f"k{i}")
    def vread(i):
        a(f"ds_read_b128 {vr(VF,4)}, v{VBV} offset:{off(i)}")
        a(f"ds_read_b128 {vr(VF+4,4)}, v{VBV} offset:{off(i)+1024}")
        lq.push(f"v{i}"); lq.push(f"v{i}")
    def wait(tag):
        n = lq.need(tag)
        if n is not None: a(f"s_waitcnt lgkmcnt({n})")
    def qk_a(i): a(f"v_mfma_f32_32x32x16_bf16 {vr(S[i%2],16)}, {vr(KF,4)}, {vr(QF,4)}, {vr(CI,16)}")
    def qk_b(i): a(f"v_mfma_f32_32x32x16_bf16 {vr(S[i%2],16)}, {vr(KF+4,4)}, {vr(QF+4,4)}, {vr(S[i%2],16)}")
    def pv_a(i): a(f"v_mfma_f32_32x32x16_bf16 {vr(O,16)}, {vr(VF,4)}, {vr(PB[i%2],4)}, {vr(O,16)}")
    def pv_b(i): a(f"v_mfma_f32_32x32x16_bf16 {vr(O,16)}, {vr(VF+4,4)}, {vr(PB[i%2]+4,4)}, {vr(O,16)}")
    kread(0)
    wait("k0")
    qk_a(0); qk_b(0)
    kread(1)
    a("s_nop 9")
    NT = 32
    for i in range(NT):
        c = i // CT
        if i % CT == SYNC:
            n = vq.need(f"c{c+1}")
            if n is not None and os.environ.get("NOBAR") != "1":
                a(f"s_waitcnt vmcnt({n})")
                a("s_barrier")
        pend = None
        if (i % CT) - SYNC in range(CT // 2) and c + PF < NCH:
            pend = (c + PF, (i % CT) - SYNC)
        if i == CT * (NCH - 2) + SYNC:
            a(f"buffer_load_dwordx4 {vr(T,4)}, v1, s[20:23], s64 offen")
        if i == CT * (NCH - 2) + SYNC:
            a("s_cmp_lg_u32 s70, 0")
            a("s_cbranch_scc1 Lk2_noll")
            local_loads()
        s = S[i % 2]; pb = PB[i % 2]
        def ex(j):
            a(f"v_exp_f32 v{s+j}, v{s+j}")
            if j % 2 == 1 and j >= 3:
                p = (j - 3) // 2
                a(f"v_cvt_pk_bf16_f32 v{pb+p}, v{s+2*p}, v{s+2*p+1}")
        if i + 1 < NT:
            wait(f"k{i+1}"); qk_a(i + 1)
        for j in range(0, 4): ex(j)
        if i + 1 < NT:
            qk_b(i + 1)
            if i + 2 < NT: kread(i + 2)
        for j in range(4, 8): ex(j)
        if pend is not None:
            dma(pend[0], [pend[1]]); vq.push(f"c{pend[0]}"); vq.push(f"c{pend[0]}")
        if i >= 1:
            wait(f"v{i-1}"); pv_a(i - 1)
        for j in range(8, 12): ex(j)
        if i >= 1:
            pv_b(i - 1)
        vread(i)
        for j in range(12, 16): ex(j)
        a("s_nop 0")
        a(f"v_cvt_pk_bf16_f32 v{pb+7}, v{s+14}, v{s+15}")
    wait(f"v{NT-1}")
    a("s_nop 0")
    pv_a(NT - 1); pv_b(NT - 1)
    stamp(a, 3)
    a(f"""s_and_b32 s37, s34, 3
    s_lshl_b32 s37, s37, 12
    s_add_u32 s37, s37, {COMB}
    v_add_u32 v6, s37, v1
    s_nop 12
    s_cmp_eq_u32 s36, 0
    s_cbranch_scc1 Lk2_e1""")
    for r in range(4):
        a(f"ds_write_b128 v6, {vr(O+4*r,4)} offset:{r*1024}")
    a("s_waitcnt lgkmcnt(0)")
    a.label("Lk2_e1")
    a("""s_barrier
    s_cmp_eq_u32 s36, 0
    s_cbranch_scc0 Lk2_local""")
    a("s_waitcnt vmcnt(0)")
    for r in range(4):
        a(f"ds_read_b128 {vr(T+4*r,4)}, v6 offset:{r*1024}")
    a(f"""s_add_u32 s46, s35, 64
    s_lshl_b32 s46, s46, 4
    s_add_u32 s46, s46, s32
    s_lshl_b32 s46, s46, 11
    s_add_u32 s46, s46, {O_OFF}
    s_waitcnt lgkmcnt(0)""")
    for r in range(16):
        a(f"v_add_f32 v{O+r}, v{O+r}, v{T+r}")
    finalize(O, "s46", check=True)
    a(f"""s_cmp_lg_u64 s[60:61], 0
    s_cselect_b32 s62, 1, 0
    v_mov_b32 v7, s62
    s_lshl_b32 s37, s34, 2
    s_add_u32 s37, s37, {FLAG}
    v_mov_b32 v6, s37
    ds_write_b32 v6, v7
    s_waitcnt lgkmcnt(0)
    s_branch Lk2_e2""")
    a.label("Lk2_local")
    OA = O; P2 = PB[1]
    a(f"""s_cmp_lg_u32 s70, 0
    s_cbranch_scc1 Lk2_e2
    v_and_b32 v3, 31, v2
    v_lshrrev_b32 v4, 5, v2
    v_lshlrev_b32 v4, 2, v4
    v_sub_u32 v8, v3, v4               ; u
    s_cmp_eq_u32 s35, 0
    s_cselect_b32 s46, 1056, 32
    v_add_u32 v9, s46, v8              ; u_prev
    v_mov_b32 v10, 0xff800000          ; -inf
    s_waitcnt vmcnt(0)
    v_mfma_f32_32x32x16_bf16 {vr(S0,16)}, {vr(LK0,4)}, {vr(LQ,4)}, 0
    v_mfma_f32_32x32x16_bf16 {vr(S0,16)}, {vr(LK0+4,4)}, {vr(LQ+4,4)}, {vr(S0,16)}
    v_mfma_f32_32x32x16_bf16 {vr(S1,16)}, {vr(LK1,4)}, {vr(LQ,4)}, 0
    v_mfma_f32_32x32x16_bf16 {vr(S1,16)}, {vr(LK1+4,4)}, {vr(LQ+4,4)}, {vr(S1,16)}""")
    items = [(S0 + j, 9, 8 * (j >> 2) + (j & 3)) for j in range(8, 16)] + [(S1 + j, 8, 8 * (j >> 2) + (j & 3)) for j in range(16)]
    first = True
    for b in range(0, 24, 8):
        grp = items[b:b + 8]
        for n, (reg, ub, cj) in enumerate(grp):
            a(f"v_subrev_u32 v{T+n}, {cj}, v{ub}")
            a(f"v_and_b32 v{T+n}, {(~14) & 0xffffffff}, v{T+n}")
        for n, (reg, ub, cj) in enumerate(grp):
            a(f"v_cmp_eq_u32 s[{52+2*n}:{53+2*n}], 0, v{T+n}")
        a("s_nop 1")
        for n, (reg, ub, cj) in enumerate(grp):
            a(f"v_cndmask_b32 v{reg}, v10, v{reg}, s[{52+2*n}:{53+2*n}]")
    regs = [it[0] for it in items]
    a(f"v_max3_f32 v3, v{regs[0]}, v{regs[1]}, v{regs[2]}")
    for n in range(3, 23, 2):
        a(f"v_max3_f32 v3, v3, v{regs[n]}, v{regs[n+1]}")
    a(f"""v_max_f32 v3, v3, v{regs[23]}
    v_mov_b32 v4, v3
    s_nop 1
    v_permlane32_swap_b32 v3, v4
    v_max_f32 v3, v3, v4""")
    for r in regs:
        a(f"v_sub_f32 v{r}, v{r}, v3")
    for r in regs:
        a(f"v_exp_f32 v{r}, v{r}")
    a("s_nop 0")
    for p in range(4):
        a(f"v_cvt_pk_bf16_f32 v{P2+p}, v{S0+8+2*p}, v{S0+9+2*p}")
    for p in range(8):
        a(f"v_cvt_pk_bf16_f32 v{P+p}, v{S1+2*p}, v{S1+2*p+1}")
    a(f"""s_nop 1
    v_mfma_f32_32x32x16_bf16 {vr(OA,16)}, {vr(LV0,4)}, {vr(P2,4)}, 0
    v_mfma_f32_32x32x16_bf16 {vr(OA,16)}, {vr(LV1,4)}, {vr(P,4)}, {vr(OA,16)}
    v_mfma_f32_32x32x16_bf16 {vr(OA,16)}, {vr(LV1+4,4)}, {vr(P+4,4)}, {vr(OA,16)}
    s_lshl_b32 s46, s35, 4
    s_add_u32 s46, s46, s32
    s_lshl_b32 s46, s46, 11
    s_add_u32 s46, s46, {O_OFF}
    s_nop 12""")
    finalize(OA, "s46")
    a.label("Lk2_e2")
    if STAMP: a("s_waitcnt vmcnt(0)")
    stamp(a, 4)
    stamp_flush(a, 5, 34)
    tl_end(a, 1, 34)
    wgt_end(a, 1, 34, 0)
    a(f"""s_barrier
    s_cmp_lg_u32 s70, 0
    s_cbranch_scc1 {ENDL}
    v_mov_b32 v6, {FLAG}
    ds_read_b128 v[8:11], v6
    s_waitcnt lgkmcnt(0)
    v_or3_b32 v8, v8, v9, v10
    v_or_b32 v8, v8, v11
    s_nop 0
    v_readfirstlane_b32 s62, v8
    s_nop 3
    s_cmp_eq_u32 s62, 0
    s_cbranch_scc1 {ENDL}""")
    a(f"""s_mov_b32 s70, 1
    v_mov_b32 v12, 0xff800000
    s_lshl_b32 s37, s36, 12
    v_add_u32 v13, s37, v1
    s_mov_b32 s63, 0""")
    a.label("Lk2_fb")
    a(f"""s_barrier
    s_lshl_b32 s43, s63, 13
    s_add_u32 s43, s43, s40
    s_mov_b32 m0, s41
    s_nop 0
    buffer_load_dwordx4 v1, s[16:19], s43 offen lds
    s_waitcnt vmcnt(0)
    s_barrier""")
    for u in range(2):
        a(f"""ds_read_b128 {vr(KF,4)}, v13 offset:{u*2048}
        ds_read_b128 {vr(KF+4,4)}, v13 offset:{u*2048+1024}
        s_waitcnt lgkmcnt(0)
        v_mfma_f32_32x32x16_bf16 {vr(S0,16)}, {vr(KF,4)}, {vr(QF,4)}, 0
        v_mfma_f32_32x32x16_bf16 {vr(S0,16)}, {vr(KF+4,4)}, {vr(QF+4,4)}, {vr(S0,16)}
        s_nop 15""")
        for n in range(0, 16, 2):
            a(f"v_max3_f32 v12, v12, v{S0+n}, v{S0+n+1}")
    a(f"""s_add_u32 s63, s63, 1
    s_cmp_lt_u32 s63, 16
    s_cbranch_scc1 Lk2_fb
    v_mov_b32 v4, v12
    s_nop 1
    v_permlane32_swap_b32 v12, v4
    v_max_f32 v3, v12, v4
    s_lshl_b32 s37, s34, 8
    s_add_u32 s37, s37, {EXCH}
    v_lshlrev_b32 v5, 2, v2
    v_add_u32 v6, s37, v5
    ds_write_b32 v6, v3
    s_xor_b32 s37, s34, 4
    s_lshl_b32 s37, s37, 8
    s_add_u32 s37, s37, {EXCH}
    v_add_u32 v6, s37, v5
    s_waitcnt lgkmcnt(0)
    s_barrier
    ds_read_b32 v4, v6
    s_waitcnt lgkmcnt(0)
    v_max_f32 v3, v3, v4""")
    for r in range(16):
        a(f"v_mov_b32 v{O+r}, 0")
    for c in range(PF): dma(c)
    a(f"""s_waitcnt vmcnt({(PF-1)*CT})
    s_barrier
    s_branch Lk2_setci""")
    if fused:
        from gen_k3 import gen_k3
        a.label("Lk2_end")
        a("s_endpgm")
        a.label("Lk2_fin")
        t3, v3, l3 = gen_k3(fused=True)
        return a.text() + t3, 256 if STAMP else 248, EXCH + 2048
    a.label("Lk2_end")
    a("s_endpgm")
    return a.text(), 256 if STAMP else 176, EXCH + 2048
```

```python
from asmlib import *
import math, struct
from gen_common import *
from gen_k2 import Q

def gen_k3(fused=False):
    a = Asm()
    LF = ' sc0 sc1' if fused else ''
    R = 452 * 128
    EX = 2 * R
    OF = 16
    ACC = 144
    WF = 176
    NB = 4
    T = 208
    if fused:
        a("""s_waitcnt vmcnt(0)
        s_barrier
        s_load_dwordx2 s[8:9], s[0:1], 64
        s_lshl_b32 s47, s33, 2
        s_waitcnt lgkmcnt(0)
        s_mov_b32 s28, s8
        s_and_b32 s29, s9, 0xffff
        s_mov_b32 s30, 256
        s_mov_b32 s31, 0x00020000
        s_cmp_eq_u32 s34, 0
        s_cbranch_scc0 Lk3_nosig
        v_mov_b32 v3, 0
        v_mov_b32 v4, 1
        s_mov_b64 exec, 1
        buffer_atomic_add v4, v3, s[28:31], s47 offen sc1
        s_mov_b64 exec, -1""")
        a.label("Lk3_nosig")
        a("""s_cmp_ge_u32 s34, 4
        s_cbranch_scc1 Lk3_end""")
    a("""s_cmp_ge_u32 s2, 224
    s_cbranch_scc1 Lk3_end
    s_load_dwordx2 s[4:5], s[0:1], 16""")
    if not fused:
        stamp(a, 0)
        tl_start(a)
        wgt_start(a)
    a("""s_load_dwordx2 s[6:7], s[0:1], 40
    s_load_dwordx2 s[8:9], s[0:1], 56
    s_load_dwordx2 s[12:13], s[0:1], 72
    s_mov_b32 s3, 0x24924925
    s_lshr_b32 s48, s2, 3              ; j
    s_mul_hi_u32 s32, s48, s3          ; j/7
    s_mul_i32 s33, s32, 7
    s_sub_u32 s33, s48, s33            ; fb
    s_and_b32 s48, s2, 7
    s_lshl_b32 s48, s48, 2
    s_add_u32 s32, s32, s48
    v_lshrrev_b32 v3, 6, v0
    v_and_b32 v2, 63, v0
    v_readfirstlane_b32 s34, v3        ; w
    v_lshlrev_b32 v1, 4, v2
    s_waitcnt lgkmcnt(0)
    s_and_b32 s35, s34, 1
    s_lshr_b32 s36, s34, 1             ; type
    s_lshl_b32 s37, s32, 1
    s_add_u32 s37, s37, s35
    s_cmp_eq_u32 s36, 0
    s_cselect_b32 s4, s4, s6
    s_cselect_b32 s5, s5, s7""")
    srd(a, 16, 4, 448 * 896)
    srd(a, 20, 12, WS_USED)
    srd(a, 24, 8, 2048 * 896)
    a(f"""v_lshrrev_b32 v3, 3, v2
    v_mul_u32_u24 v4, 896, v3
    v_lshrrev_b32 v3, 2, v2
    v_and_b32 v3, 4, v3                ; ((l>>4)&1)<<2
    v_and_b32 v5, 7, v2
    v_xor_b32 v3, v3, v5
    v_lshlrev_b32 v3, 4, v3
    v_add_u32 v4, v4, v3
    s_mul_i32 s40, s36, {R}
    s_lshl_b32 s41, s35, 10
    s_add_u32 s40, s40, s41
    s_mul_i32 s41, s35, {8*896}
    s_lshl_b32 s42, s33, 7
    s_add_u32 s41, s41, s42
    v_lshlrev_b32 v5, 3, v2
    s_mul_i32 s42, s36, {R}
    s_add_u32 s42, s42, {448*128}
    v_add_u32 v5, s42, v5
    v_mov_b32 v6, 0
    v_mov_b32 v7, 0
    ds_write_b64 v5, v[6:7]
    v_and_b32 v3, 31, v2
    v_lshlrev_b32 v5, 2, v3
    s_lshl_b32 s42, s37, 7
    s_add_u32 s42, s42, {G_OFF}
    buffer_load_dword v14, v5, s[20:23], s42 offen
    s_lshl_b32 s46, s37, 15
    s_lshl_b32 s43, s36, 21
    s_add_u32 s46, s46, s43
    s_add_u32 s46, s46, {O_OFF}""")
    vq = Q()
    JB = [0, 8, 15, 22, 28]
    def issue_items(p):
        items = []
        for j in range(JB[p], JB[p + 1]):
            items.append((f"""s_add_u32 m0, s40, {j*2048}
            s_add_u32 s42, s41, {j*16*896}
            buffer_load_dwordx4 v4, s[16:19], s42 offen lds""", f"d{p}"))
        for n in range(8 * p, 8 * p + 8):
            pre = "s_add_u32 s46, s46, 4096\n" if (n % 4 == 0 and n) else ""
            items.append((pre + f"buffer_load_dwordx4 {vr(OF+4*n,4)}, v1, s[20:23], s46 offen offset:{(n%4)*1024}{LF}", f"o{n}"))
        return items
    def issue(p):
        for txt, tag in issue_items(p):
            a(txt); vq.push(tag)
    if not fused:
        issue(0); issue(1)
    else:
        allit = [it for p in range(4) for it in issue_items(p)]
        for txt, tag in allit:
            if tag[0] == "d": a(txt)
        a("""s_lshr_b32 s47, s32, 1
        s_lshl_b32 s47, s47, 2
        s_mov_b32 s49, 0
        v_mov_b32 v240, 0
        s_cmp_eq_u32 s34, 0
        s_cbranch_scc0 Lk3_polled""")
        a.label("Lk3_poll")
        a("""buffer_load_dword v241, v240, s[28:31], s47 offen sc0 sc1
        s_waitcnt vmcnt(0)
        v_readfirstlane_b32 s50, v241
        s_add_u32 s49, s49, 1
        s_nop 2
        s_cmp_ge_u32 s50, 16
        s_cbranch_scc1 Lk3_polled
        s_sleep 1
        s_cmp_lt_u32 s49, 200000
        s_cbranch_scc1 Lk3_poll""")
        a.label("Lk3_polled")
        a("""s_waitcnt vmcnt(0) lgkmcnt(0)
        s_barrier""")
        for txt, tag in allit:
            if tag[0] == "o":
                a(txt); vq.push(tag)
    a(f"""v_lshrrev_b32 v5, 5, v2
    v_lshlrev_b32 v6, 9, v5            ; hh*4*128
    v_and_b32 v5, 15, v2
    v_lshrrev_b32 v5, 2, v5            ; r
    v_lshlrev_b32 v7, 7, v5
    v_add_u32 v6, v6, v7
    v_lshrrev_b32 v5, 1, v5
    v_lshlrev_b32 v5, 6, v5            ; ((r>>1)&1)*64
    v_add_u32 v6, v6, v5
    v_lshrrev_b32 v5, 4, v2
    v_and_b32 v5, 1, v5
    v_lshlrev_b32 v5, 5, v5
    v_add_u32 v6, v6, v5
    v_and_b32 v5, 3, v2
    v_lshlrev_b32 v5, 3, v5
    v_add_u32 v6, v6, v5
    s_mul_i32 s42, s36, {R}
    v_add_u32 v6, s42, v6              ; ftl 0
    v_xor_b32 v7, 64, v6               ; ftl 1
    s_lshl_b32 s42, s37, 5
    v_add_u32 v3, s42, v3
    v_mul_u32_u24 v8, 896, v3
    v_lshrrev_b32 v5, 5, v2
    v_lshlrev_b32 v5, 4, v5
    v_add_u32 v8, v8, v5
    s_lshl_b32 s44, s33, 7
    s_lshl_b32 s42, s36, 6
    s_add_u32 s44, s44, s42
    s_lshl_b32 s42, s34, 11
    s_add_u32 s42, s42, {EX}
    v_add_u32 v9, s42, v1
    s_xor_b32 s42, s34, 2
    s_lshl_b32 s42, s42, 11
    s_add_u32 s42, s42, {EX}
    v_add_u32 v10, s42, v1
    s_waitcnt lgkmcnt(0)""")
    def rd(n):
        h, ks = n >> 1, n & 1
        b = WF + (n % NB) * 8
        off = (h * 28 + 16 * ks) * 128
        for f in range(2):
            a(f"ds_read_b64_tr_b16 {vr(b+4*f,2)}, v{6+f} offset:{off}")
            a(f"ds_read_b64_tr_b16 {vr(b+4*f+2,2)}, v{6+f} offset:{off+1024}")
    for n in range(32):
        lim = 31
        if not fused:
            if n == 0:
                a(f"s_waitcnt vmcnt({vq.need('d0')})")
                a("s_barrier")
                stamp(a, 1)
                for i in range(NB - 1): rd(n + i)
            if n % 8 == 0:
                pend = issue_items(n // 8 + 2) if n // 8 + 2 < 4 else []
            if (n + NB - 1) % 8 == 0 and n + NB - 1 < 32:
                a(f"s_waitcnt vmcnt({vq.need(f'd{(n+NB-1)//8}')})")
                a("s_barrier")
        else:
            pend = []
            if n == 0:
                for i in range(NB - 1): rd(n + i)
        if n + NB - 1 <= lim: rd(n + NB - 1)
        rem = min(NB - 1, lim - n)
        nv = vq.need(f'o{n}')
        a(f"s_waitcnt lgkmcnt({4*rem})" if nv is None else f"s_waitcnt vmcnt({nv}) lgkmcnt({4*rem})")
        b = WF + (n % NB) * 8
        for f in range(2):
            c = "0" if n == 0 else vr(ACC + 16 * f, 16)
            a(f"v_mfma_f32_32x32x16_bf16 {vr(ACC+16*f,16)}, {vr(b+4*f,4)}, {vr(OF+4*n,4)}, {c}")
        for _ in range(2):
            if pend:
                txt, tag = pend.pop(0)
                a(txt); vq.push(tag)
    if not fused: stamp(a, 2)
    a(f"""v_sub_f32 v15, 1.0, v14
    v_cvt_pk_bf16_f32 v15, v15, v15
    v_lshlrev_b32 v15, 16, v15
    s_mov_b32 s45, 0xffff0000
    s_cmp_eq_u32 s36, 0
    s_cbranch_scc1 Lk3_t0
    v_mov_b32 v13, v14
    v_mov_b32 v14, v15
    v_mov_b32 v15, v13""")
    a.label("Lk3_t0")
    a("s_nop 10")
    for f in range(2):
        for p in range(8):
            a(f"v_cvt_pk_bf16_f32 v{T+8*f+p}, v{ACC+16*f+2*p}, v{ACC+16*f+2*p+1}")
    a("""s_cmp_eq_u32 s36, 0
    s_cbranch_scc1 Lk3_t1""")
    for p in range(8):
        a(f"v_swap_b32 v{T+p}, v{T+8+p}")
    a.label("Lk3_t1")
    a(f"""ds_write_b128 v9, {vr(T+8,4)}
    ds_write_b128 v9, {vr(T+12,4)} offset:1024
    s_waitcnt lgkmcnt(0)
    s_barrier
    ds_read_b128 {vr(T+8,4)}, v10
    ds_read_b128 {vr(T+12,4)}, v10 offset:1024""")
    A, B = ACC, ACC + 16
    for p in range(8):
        a(f"v_lshlrev_b32 v{A+2*p}, 16, v{T+p}")
        a(f"v_and_b32 v{A+2*p+1}, s45, v{T+p}")
    for r in range(16):
        a(f"v_mul_f32 v{A+r}, v14, v{A+r}")
    for p in range(8):
        a(f"v_cvt_pk_bf16_f32 v{T+p}, v{A+2*p}, v{A+2*p+1}")
    for p in range(8):
        a(f"v_lshlrev_b32 v{A+2*p}, 16, v{T+p}")
        a(f"v_and_b32 v{A+2*p+1}, s45, v{T+p}")
    a("s_waitcnt lgkmcnt(0)")
    for p in range(8):
        a(f"v_lshlrev_b32 v{B+2*p}, 16, v{T+8+p}")
        a(f"v_and_b32 v{B+2*p+1}, s45, v{T+8+p}")
    for r in range(16):
        a(f"v_mul_f32 v{B+r}, v15, v{B+r}")
    for p in range(8):
        a(f"v_cvt_pk_bf16_f32 v{T+8+p}, v{B+2*p}, v{B+2*p+1}")
    for p in range(8):
        a(f"v_lshlrev_b32 v{B+2*p}, 16, v{T+8+p}")
        a(f"v_and_b32 v{B+2*p+1}, s45, v{T+8+p}")
    for r in range(16):
        a(f"v_add_f32 v{A+r}, v{A+r}, v{B+r}")
    for p in range(8):
        a(f"v_cvt_pk_bf16_f32 v{T+p}, v{A+2*p}, v{A+2*p+1}")
    a("s_nop 1")
    for g in (0, 2):
        a(f"v_permlane32_swap_b32 v{T+2*g}, v{T+2*g+2}")
        a(f"v_permlane32_swap_b32 v{T+2*g+1}, v{T+2*g+3}")
    for g in (0, 2):
        a(f"buffer_store_dwordx4 {vr(T+2*g,4)}, v8, s[24:27], s44 offen offset:{g*16}{SF3}")
    if not fused:
        if STAMP: a("s_waitcnt vmcnt(0)")
        stamp(a, 3)
        stamp_flush(a, 4, 34)
        tl_end(a, 2, 34)
        wgt_end(a, 2, 34, 0)
    a.label("Lk3_end")
    a("s_endpgm")
    return a.text(), 256 if STAMP else 240, EX + 8192
```

```python
import sys
from asmlib import *
from gen_k1 import gen_k1
from gen_k2 import gen_k2
from gen_k3 import gen_k3

def build(kernels):
    hdr = open("gated_mix__sliding_local_dilated__mha_block__prompt.s.ref").read().split("; Override")[0]
    out = hdr
    for (name, grid, block, lds, _, _) in kernels:
        out += f"; @launch kernel={name} grid=({grid},1,1) block=({block},1,1) lds={lds}\n"
    out += '.amdgcn_target "amdgcn-amd-amdhsa--gfx950"\n.text\n'
    for (name, grid, block, lds, body, vg) in kernels:
        out += kernel_header(name) + body
    out += '.section .rodata,"a"\n.p2align 6\n'
    for (name, grid, block, lds, body, vg) in kernels:
        out += ".p2align 6\n" + kernel_desc(name, vg, accum=(256 if vg > 256 else None))
    return out

if __name__ == "__main__":
    k1, v1, lds1 = gen_k1()
    import os
    if os.environ.get("FUSE", "0") == "1":
        k2, v2, lds2 = gen_k2(fused=True)
        kernels = [("qkv_kernel", 256, 512, lds1, k1, v1), ("attn_kernel", 256, 512, lds2, k2, v2)]
    else:
        k2, v2, lds2 = gen_k2()
        k3, v3, lds3 = gen_k3()
        kernels = [("qkv_kernel", 256, 512, lds1, k1, v1), ("attn_kernel", 256, 512, lds2, k2, v2), ("proj_kernel", 224, 256, lds3, k3, v3)]
    dst = sys.argv[1] if len(sys.argv) > 1 else "gated_mix__sliding_local_dilated__mha_block__prompt.s"
    open(dst, "w").write(build(kernels))
```

```python
from asmlib import *
import math, struct, os
from gen_common import *

class Q:
    def __init__(self): self.q = []
    def push(self, tag): self.q.append(tag)
    def need(self, tag):
        last = -1
        for i, t in enumerate(self.q):
            if t == tag: last = i
        if last < 0: return None
        n = len(self.q) - 1 - last
        self.q = self.q[last + 1:]
        return n

def gen_k2(fused=False):
    a = Asm()
    ENDL = 'Lk2_fin' if fused else 'Lk2_end'
    QF, KF, VF, S0, S1, O, CI = 16, 24, 32, 48, 64, 80, 96
    PB = [40, 112]
    VBK, VBV = 120, 121
    LQ, LK0, LK1, LV0, LV1 = 124, 132, 140, 148, 152
    T = 160
    CT = int(os.environ.get('CT', '4'))
    CB = CT * 4096
    NS = 5 if CT == 2 else 4
    NCH = 32 // CT
    PF = 3
    SYNC = 0 if CT == 2 else CT - 2
    VREG = NS * CB
    COMB = 2 * VREG; FLAG = COMB + 16384; EXCH = FLAG + 256
    S = [S0, S1]
    P = PB[0]
    a("""s_cmp_ge_u32 s2, 256
    s_cbranch_scc1 Lk2_end
    s_load_dwordx2 s[12:13], s[0:1], 72
    s_load_dwordx2 s[4:5], s[0:1], 16
    s_load_dwordx2 s[6:7], s[0:1], 40""")
    stamp(a, 0)
    tl_start(a)
    wgt_start(a)
    a(f"""s_and_b32 s32, s2, 7
    s_lshr_b32 s33, s2, 3
    s_lshl_b32 s32, s32, 1
    s_and_b32 s37, s33, 1
    s_add_u32 s32, s32, s37            ; h
    s_lshr_b32 s33, s33, 1             ; qb
    v_lshrrev_b32 v3, 6, v0
    v_and_b32 v2, 63, v0
    v_readfirstlane_b32 s34, v3        ; w
    v_lshlrev_b32 v1, 4, v2            ; lane*16
    s_mov_b32 s70, 0
    s_and_b32 s37, s34, 3
    s_lshl_b32 s35, s33, 2
    s_add_u32 s35, s35, s37            ; qt
    s_lshr_b32 s36, s34, 2             ; ksp
    s_mul_i32 s37, s36, {CT*2048}
    v_add_u32 v{VBK}, s37, v1
    v_add_u32 v{VBV}, {VREG}, v{VBK}
    s_waitcnt lgkmcnt(0)""")
    srd(a, 16, 12, WS_USED)
    a("""s_lshl_b32 s64, s2, 3
    s_add_u32 s64, s64, s34
    s_cmp_lt_u32 s64, 392
    s_cselect_b32 s4, s4, s6
    s_cselect_b32 s5, s5, s7
    s_sub_u32 s65, s64, 392
    s_cselect_b32 s64, s64, s65
    s_lshl_b32 s64, s64, 10""")
    srd(a, 20, 4, 448 * 896)
    a(f"""s_add_u32 s37, s32, 16
    s_lshl_b32 s38, s37, 6
    s_add_u32 s38, s38, s35
    s_lshl_b32 s38, s38, 11
    buffer_load_dwordx4 {vr(QF,4)}, v1, s[16:19], s38 offen
    buffer_load_dwordx4 {vr(QF+4,4)}, v1, s[16:19], s38 offen offset:1024
    s_lshl_b32 s40, s37, 17            ; (16+h)*131072
    s_lshl_b32 s41, s34, 10            ; w*1024
    s_add_u32 s40, s40, s41
    s_add_u32 s42, s40, {V_OFF}        ; V base
    s_add_u32 s40, s40, {K_OFF}        ; K base
    s_mov_b32 s48, 0xffffffff
    s_mov_b32 s49, 0""")
    def local_loads():
        a(f"""s_cmp_eq_u32 s36, 1
        s_cbranch_scc0 Lk2_noll
        s_lshl_b32 s38, s32, 6
        s_add_u32 s39, s38, s35            ; h*64+qt
        s_sub_u32 s45, s35, 1
        s_max_i32 s45, s45, 0
        s_add_u32 s45, s38, s45            ; h*64+prev
        s_lshl_b32 s39, s39, 11
        s_lshl_b32 s45, s45, 11
        buffer_load_dwordx4 {vr(LQ,4)}, v1, s[16:19], s39 offen
        buffer_load_dwordx4 {vr(LQ+4,4)}, v1, s[16:19], s39 offen offset:1024
        s_add_u32 s46, s45, {K_OFF}
        buffer_load_dwordx4 {vr(LK0,4)}, v1, s[16:19], s46 offen
        buffer_load_dwordx4 {vr(LK0+4,4)}, v1, s[16:19], s46 offen offset:1024
        s_add_u32 s46, s39, {K_OFF}
        buffer_load_dwordx4 {vr(LK1,4)}, v1, s[16:19], s46 offen
        buffer_load_dwordx4 {vr(LK1+4,4)}, v1, s[16:19], s46 offen offset:1024
        s_add_u32 s46, s45, {V_OFF}
        buffer_load_dwordx4 {vr(LV0,4)}, v1, s[16:19], s46 offen offset:1024
        s_add_u32 s46, s39, {V_OFF}
        buffer_load_dwordx4 {vr(LV1,4)}, v1, s[16:19], s46 offen
        buffer_load_dwordx4 {vr(LV1+4,4)}, v1, s[16:19], s46 offen offset:1024""")
        a.label("Lk2_noll")
    def dma(c, us=None):
        slot = c % NS
        for u in (range(CT // 2) if us is None else us):
            a(f"""s_add_u32 s43, s40, {c*CB + u*8192}
            s_add_u32 m0, s41, {slot*CB + u*8192}
            s_add_u32 s44, s42, {c*CB + u*8192}
            buffer_load_dwordx4 v1, s[16:19], s43 offen lds
            s_add_u32 m0, s41, {VREG+slot*CB + u*8192}
            s_nop 0
            buffer_load_dwordx4 v1, s[16:19], s44 offen lds""")
    for c in range(PF - 1): dma(c)

    def finalize(Oreg, soff, check=False):
        a(f"""v_mov_b32 v3, v{Oreg+12}
        v_mov_b32 v4, v{Oreg+12}
        s_nop 1
        v_permlane32_swap_b32 v3, v4
        v_rcp_f32 v5, v4""")
        if check:
            a(f"""v_mov_b32 v6, 0.5
            v_mov_b32 v7, {f32bits(2.0**40)}
            v_cmp_nge_f32 vcc, v4, v6
            v_cmp_nle_f32 s[60:61], v4, v7
            s_or_b64 s[60:61], s[60:61], vcc""")
        else:
            a("s_nop 0")
        for r in range(16):
            a(f"v_mul_f32 v{Oreg+r}, v5, v{Oreg+r}")
        for p in range(8):
            a(f"v_cvt_pk_bf16_f32 v{P+p}, v{Oreg+2*p}, v{Oreg+2*p+1}")
        a(f"""v_cndmask_b32 v{P+6}, 0, v{P+6}, s[48:49]
        v_cndmask_b32 v{P+7}, 0, v{P+7}, s[48:49]
        buffer_store_dwordx4 {vr(P,4)}, v1, s[16:19], {soff} offen{SF}
        buffer_store_dwordx4 {vr(P+4,4)}, v1, s[16:19], {soff} offen offset:1024{SF}""")

    a(f"""s_waitcnt vmcnt({(PF-2)*CT})
    s_barrier""")
    stamp(a, 1)
    a(f"""ds_read_b128 {vr(KF,4)}, v1
    ds_read_b128 {vr(KF+4,4)}, v1 offset:1024
    s_waitcnt lgkmcnt(0)
    v_mfma_f32_32x32x16_bf16 {vr(S0,16)}, {vr(KF,4)}, {vr(QF,4)}, 0
    v_mfma_f32_32x32x16_bf16 {vr(S0,16)}, {vr(KF+4,4)}, {vr(QF+4,4)}, {vr(S0,16)}""")
    dma(PF - 1)
    for r in range(16):
        a(f"v_mov_b32 v{O+r}, 0")
    a(f"v_max3_f32 v3, v{S0}, v{S0+1}, v{S0+2}")
    for n in range(3, 15, 2):
        a(f"v_max3_f32 v3, v3, v{S0+n}, v{S0+n+1}")
    a(f"""v_max_f32 v3, v3, v{S0+15}
    v_mov_b32 v4, v3
    s_nop 1
    v_permlane32_swap_b32 v3, v4
    v_max_f32 v3, v3, v4""")
    a.label("Lk2_setci")
    stamp(a, 2)
    for r in range(16):
        a(f"v_sub_f32 v{CI+r}, 0, v3")
    lq = Q(); vq = Q()
    for c in range(1, PF):
        for _ in range(CT): vq.push(f"c{c}")
    def off(i):
        return ((i // CT) % NS) * CB + (i % CT) * 2048
    def kread(i):
        a(f"ds_read_b128 {vr(KF,4)}, v{VBK} offset:{off(i)}")
        a(f"ds_read_b128 {vr(KF+4,4)}, v{VBK} offset:{off(i)+1024}")
        lq.push(f"k{i}"); lq.push(f"k{i}")
    def vread(i):
        a(f"ds_read_b128 {vr(VF,4)}, v{VBV} offset:{off(i)}")
        a(f"ds_read_b128 {vr(VF+4,4)}, v{VBV} offset:{off(i)+1024}")
        lq.push(f"v{i}"); lq.push(f"v{i}")
    def wait(tag):
        n = lq.need(tag)
        if n is not None: a(f"s_waitcnt lgkmcnt({n})")
    def qk_a(i): a(f"v_mfma_f32_32x32x16_bf16 {vr(S[i%2],16)}, {vr(KF,4)}, {vr(QF,4)}, {vr(CI,16)}")
    def qk_b(i): a(f"v_mfma_f32_32x32x16_bf16 {vr(S[i%2],16)}, {vr(KF+4,4)}, {vr(QF+4,4)}, {vr(S[i%2],16)}")
    def pv_a(i): a(f"v_mfma_f32_32x32x16_bf16 {vr(O,16)}, {vr(VF,4)}, {vr(PB[i%2],4)}, {vr(O,16)}")
    def pv_b(i): a(f"v_mfma_f32_32x32x16_bf16 {vr(O,16)}, {vr(VF+4,4)}, {vr(PB[i%2]+4,4)}, {vr(O,16)}")
    if os.environ.get("PRIO"):
        a(f"""s_cmp_eq_u32 s36, {os.environ["PRIO"]}
        s_cbranch_scc0 Lk2_prio
        s_setprio 1""")
        a.label("Lk2_prio")
    kread(0)
    wait("k0")
    qk_a(0); qk_b(0)
    kread(1)
    a("s_nop 9")
    NT = 32
    for i in range(NT):
        c = i // CT
        if i % CT == SYNC:
            n = vq.need(f"c{c+1}")
            if n is not None and os.environ.get("NOBAR") != "1":
                a(f"s_waitcnt vmcnt({n})")
                a("s_barrier")
        pend = None
        if (i % CT) - SYNC in range(CT // 2) and c + PF < NCH:
            pend = (c + PF, (i % CT) - SYNC)
        if i == CT * (NCH - 2) + SYNC:
            a(f"buffer_load_dwordx4 {vr(T,4)}, v1, s[20:23], s64 offen")
        if i == CT * (NCH - 2) + SYNC:
            a("s_cmp_lg_u32 s70, 0")
            a("s_cbranch_scc1 Lk2_noll")
            local_loads()
        s = S[i % 2]; pb = PB[i % 2]
        def ex(j):
            a(f"v_exp_f32 v{s+j}, v{s+j}")
            if j % 2 == 1 and j >= 3:
                p = (j - 3) // 2
                a(f"v_cvt_pk_bf16_f32 v{pb+p}, v{s+2*p}, v{s+2*p+1}")
        if i + 1 < NT:
            wait(f"k{i+1}"); qk_a(i + 1)
        for j in range(0, 4): ex(j)
        if i + 1 < NT:
            qk_b(i + 1)
            if i + 2 < NT: kread(i + 2)
        for j in range(4, 8): ex(j)
        if pend is not None:
            dma(pend[0], [pend[1]]); vq.push(f"c{pend[0]}"); vq.push(f"c{pend[0]}")
        if i >= 1:
            wait(f"v{i-1}"); pv_a(i - 1)
        for j in range(8, 12): ex(j)
        if i >= 1:
            pv_b(i - 1)
        vread(i)
        for j in range(12, 16): ex(j)
        a("s_nop 0")
        a(f"v_cvt_pk_bf16_f32 v{pb+7}, v{s+14}, v{s+15}")
    wait(f"v{NT-1}")
    a("s_nop 0")
    pv_a(NT - 1); pv_b(NT - 1)
    stamp(a, 3)
    a(f"""s_and_b32 s37, s34, 3
    s_lshl_b32 s37, s37, 12
    s_add_u32 s37, s37, {COMB}
    v_add_u32 v6, s37, v1
    s_nop 12
    s_cmp_eq_u32 s36, 0
    s_cbranch_scc1 Lk2_e1""")
    for r in range(4):
        a(f"ds_write_b128 v6, {vr(O+4*r,4)} offset:{r*1024}")
    a("s_waitcnt lgkmcnt(0)")
    a.label("Lk2_e1")
    a("""s_barrier
    s_cmp_eq_u32 s36, 0
    s_cbranch_scc0 Lk2_local""")
    a("s_waitcnt vmcnt(0)")
    for r in range(4):
        a(f"ds_read_b128 {vr(T+4*r,4)}, v6 offset:{r*1024}")
    a(f"""s_add_u32 s46, s35, 64
    s_lshl_b32 s46, s46, 4
    s_add_u32 s46, s46, s32
    s_lshl_b32 s46, s46, 11
    s_add_u32 s46, s46, {O_OFF}
    s_waitcnt lgkmcnt(0)""")
    for r in range(16):
        a(f"v_add_f32 v{O+r}, v{O+r}, v{T+r}")
    finalize(O, "s46", check=True)
    a(f"""s_cmp_lg_u64 s[60:61], 0
    s_cselect_b32 s62, 1, 0
    v_mov_b32 v7, s62
    s_lshl_b32 s37, s34, 2
    s_add_u32 s37, s37, {FLAG}
    v_mov_b32 v6, s37
    ds_write_b32 v6, v7
    s_waitcnt lgkmcnt(0)
    s_branch Lk2_e2""")
    a.label("Lk2_local")
    OA = O; P2 = PB[1]
    a(f"""s_cmp_lg_u32 s70, 0
    s_cbranch_scc1 Lk2_e2
    v_and_b32 v3, 31, v2
    v_lshrrev_b32 v4, 5, v2
    v_lshlrev_b32 v4, 2, v4
    v_sub_u32 v8, v3, v4               ; u
    s_cmp_eq_u32 s35, 0
    s_cselect_b32 s46, 1056, 32
    v_add_u32 v9, s46, v8              ; u_prev
    v_mov_b32 v10, 0xff800000          ; -inf
    s_waitcnt vmcnt(0)
    v_mfma_f32_32x32x16_bf16 {vr(S0,16)}, {vr(LK0,4)}, {vr(LQ,4)}, 0
    v_mfma_f32_32x32x16_bf16 {vr(S0,16)}, {vr(LK0+4,4)}, {vr(LQ+4,4)}, {vr(S0,16)}
    v_mfma_f32_32x32x16_bf16 {vr(S1,16)}, {vr(LK1,4)}, {vr(LQ,4)}, 0
    v_mfma_f32_32x32x16_bf16 {vr(S1,16)}, {vr(LK1+4,4)}, {vr(LQ+4,4)}, {vr(S1,16)}""")
    items = [(S0 + j, 9, 8 * (j >> 2) + (j & 3)) for j in range(8, 16)] + [(S1 + j, 8, 8 * (j >> 2) + (j & 3)) for j in range(16)]
    def lmask(prev, cj):
        m = 0
        for l in range(64):
            t = (l & 31) - 4 * (l >> 5) + (32 if prev else 0) - cj
            if 0 <= t <= 14 and t % 2 == 0: m |= 1 << l
        return m
    a("""s_cmp_eq_u32 s35, 0
    s_cselect_b32 s68, 0, -1
    s_mov_b32 s69, s68""")
    for b in range(0, 24, 8):
        grp = items[b:b + 8]
        for n, (reg, ub, cj) in enumerate(grp):
            m = lmask(ub == 9, cj)
            a(f"s_mov_b32 s{52+2*n}, {m & 0xffffffff}")
            a(f"s_mov_b32 s{53+2*n}, {m >> 32}")
            if ub == 9:
                a(f"s_and_b64 s[{52+2*n}:{53+2*n}], s[{52+2*n}:{53+2*n}], s[68:69]")
        for n, (reg, ub, cj) in enumerate(grp):
            a(f"v_cndmask_b32 v{reg}, v10, v{reg}, s[{52+2*n}:{53+2*n}]")
    regs = [it[0] for it in items]
    a(f"v_max3_f32 v3, v{regs[0]}, v{regs[1]}, v{regs[2]}")
    for n in range(3, 23, 2):
        a(f"v_max3_f32 v3, v3, v{regs[n]}, v{regs[n+1]}")
    a(f"""v_max_f32 v3, v3, v{regs[23]}
    v_mov_b32 v4, v3
    s_nop 1
    v_permlane32_swap_b32 v3, v4
    v_max_f32 v3, v3, v4""")
    for r in regs:
        a(f"v_sub_f32 v{r}, v{r}, v3")
    for r in regs:
        a(f"v_exp_f32 v{r}, v{r}")
    a("s_nop 0")
    for p in range(4):
        a(f"v_cvt_pk_bf16_f32 v{P2+p}, v{S0+8+2*p}, v{S0+9+2*p}")
    for p in range(8):
        a(f"v_cvt_pk_bf16_f32 v{P+p}, v{S1+2*p}, v{S1+2*p+1}")
    a(f"""s_nop 1
    v_mfma_f32_32x32x16_bf16 {vr(OA,16)}, {vr(LV0,4)}, {vr(P2,4)}, 0
    v_mfma_f32_32x32x16_bf16 {vr(OA,16)}, {vr(LV1,4)}, {vr(P,4)}, {vr(OA,16)}
    v_mfma_f32_32x32x16_bf16 {vr(OA,16)}, {vr(LV1+4,4)}, {vr(P+4,4)}, {vr(OA,16)}
    s_lshl_b32 s46, s35, 4
    s_add_u32 s46, s46, s32
    s_lshl_b32 s46, s46, 11
    s_add_u32 s46, s46, {O_OFF}
    s_nop 12""")
    finalize(OA, "s46")
    a.label("Lk2_e2")
    if STAMP: a("s_waitcnt vmcnt(0)")
    stamp(a, 4)
    stamp_flush(a, 5, 34)
    tl_end(a, 1, 34)
    wgt_end(a, 1, 34, 0)
    a(f"""s_barrier
    s_cmp_lg_u32 s70, 0
    s_cbranch_scc1 {ENDL}
    v_mov_b32 v6, {FLAG}
    ds_read_b128 v[8:11], v6
    s_waitcnt lgkmcnt(0)
    v_or3_b32 v8, v8, v9, v10
    v_or_b32 v8, v8, v11
    s_nop 0
    v_readfirstlane_b32 s62, v8
    s_nop 3
    s_cmp_eq_u32 s62, 0
    s_cbranch_scc1 {ENDL}""")
    a(f"""s_mov_b32 s70, 1
    v_mov_b32 v12, 0xff800000
    s_lshl_b32 s37, s36, 12
    v_add_u32 v13, s37, v1
    s_mov_b32 s63, 0""")
    a.label("Lk2_fb")
    a(f"""s_barrier
    s_lshl_b32 s43, s63, 13
    s_add_u32 s43, s43, s40
    s_mov_b32 m0, s41
    s_nop 0
    buffer_load_dwordx4 v1, s[16:19], s43 offen lds
    s_waitcnt vmcnt(0)
    s_barrier""")
    for u in range(2):
        a(f"""ds_read_b128 {vr(KF,4)}, v13 offset:{u*2048}
        ds_read_b128 {vr(KF+4,4)}, v13 offset:{u*2048+1024}
        s_waitcnt lgkmcnt(0)
        v_mfma_f32_32x32x16_bf16 {vr(S0,16)}, {vr(KF,4)}, {vr(QF,4)}, 0
        v_mfma_f32_32x32x16_bf16 {vr(S0,16)}, {vr(KF+4,4)}, {vr(QF+4,4)}, {vr(S0,16)}
        s_nop 15""")
        for n in range(0, 16, 2):
            a(f"v_max3_f32 v12, v12, v{S0+n}, v{S0+n+1}")
    a(f"""s_add_u32 s63, s63, 1
    s_cmp_lt_u32 s63, 16
    s_cbranch_scc1 Lk2_fb
    v_mov_b32 v4, v12
    s_nop 1
    v_permlane32_swap_b32 v12, v4
    v_max_f32 v3, v12, v4
    s_lshl_b32 s37, s34, 8
    s_add_u32 s37, s37, {EXCH}
    v_lshlrev_b32 v5, 2, v2
    v_add_u32 v6, s37, v5
    ds_write_b32 v6, v3
    s_xor_b32 s37, s34, 4
    s_lshl_b32 s37, s37, 8
    s_add_u32 s37, s37, {EXCH}
    v_add_u32 v6, s37, v5
    s_waitcnt lgkmcnt(0)
    s_barrier
    ds_read_b32 v4, v6
    s_waitcnt lgkmcnt(0)
    v_max_f32 v3, v3, v4""")
    for r in range(16):
        a(f"v_mov_b32 v{O+r}, 0")
    for c in range(PF): dma(c)
    a(f"""s_waitcnt vmcnt({(PF-1)*CT})
    s_barrier
    s_branch Lk2_setci""")
    if fused:
        from gen_k3 import gen_k3
        a.label("Lk2_end")
        a("s_endpgm")
        a.label("Lk2_fin")
        t3, v3, l3 = gen_k3(fused=True)
        return a.text() + t3, 256 if STAMP else 248, EXCH + 2048
    a.label("Lk2_end")
    a("s_endpgm")
    return a.text(), 256 if STAMP else 176, EXCH + 2048
```
